```python
import torch

def _softmax(x, axis=-1):
    return torch.softmax(x, dim=axis)
def _gelu(x):
    return torch.nn.functional.gelu(x, approximate="tanh")
def _silu(x):
    return torch.nn.functional.silu(x)
def _sigmoid(x):
    return torch.sigmoid(x)
def _layernorm(x, axis=-1, eps=1e-5):
    m = x.mean(dim=axis, keepdim=True)
    v = x.var(dim=axis, keepdim=True, unbiased=False)
    return (x - m) / torch.sqrt(v + eps)
def _scatter_add(tgt, idx, src, axis=0):
    return tgt.clone().index_add_(axis, idx, src)
def _segment_sum(src, seg, n):
    out = torch.zeros((n,) + src.shape[1:], dtype=src.dtype)
    return out.index_add_(0, seg, src)
def _pad(x, pw):
    flat = tuple(v for pair in reversed(pw) for v in pair)
    return torch.nn.functional.pad(x, flat)

kernel_name = 'sequential_preLN__gqa_block_cached__mixer_token_mlp__decode'

def setup_inputs():

    _w = (lambda a: (lambda t: t.to(torch.bfloat16) if t.is_floating_point() else t)(torch.as_tensor(a)))
    def _A_setup():
        B, Sq, D = 8, 1, 448
        Hq, Hkv, Sk, Dh = 16, 8, 8192, 256
        assert Hq % Hkv == 0, (Hq, Hkv)
        return {
            "x": _w((lambda *s: torch.randn(*s, dtype=torch.bfloat16) * 0.05)(B, Sq, D)),
            "k_cache": _w((lambda *s: torch.randn(*s, dtype=torch.bfloat16) * 1.6)(B, Hkv, Sk, Dh)),
            "v_cache": _w((lambda *s: torch.randn(*s, dtype=torch.bfloat16) * 0.8)(B, Hkv, Sk, Dh)),
            "wq": _w((lambda *s: torch.randn(*s, dtype=torch.bfloat16) * 1.6)(D, Hq * Dh) * (D ** -0.5)),
            "wo": _w((lambda *s: torch.randn(*s, dtype=torch.bfloat16) * 0.8)(Hq * Dh, D) * ((Hq * Dh) ** -0.5)),
        }
    _A_in = _A_setup()

    def _B_setup():
        B, S, D, F = 8, 1, 448, 1792
        return {
            "x": _w((lambda *s: torch.randn(*s, dtype=torch.bfloat16) * 0.05)(B, S, D)),
            "w1": _w((lambda *s: torch.randn(*s, dtype=torch.bfloat16) * 0.4)(S, F) * (S ** -0.5)),
            "b1": _w((lambda *s: torch.randn(*s, dtype=torch.bfloat16) * 0.4)(F) * 0.02),
            "w2": _w((lambda *s: torch.randn(*s, dtype=torch.bfloat16) * 0.4)(F, S) * (F ** -0.5)),
            "b2": _w((lambda *s: torch.randn(*s, dtype=torch.bfloat16) * 0.4)(S) * 0.02),
        }
    _B_in = _B_setup()

    return {
        "A_x": _A_in["x"],
        "A_k_cache": _A_in["k_cache"],
        "A_v_cache": _A_in["v_cache"],
        "A_wq": _A_in["wq"],
        "A_wo": _A_in["wo"],
        "B_x": _B_in["x"],
        "B_w1": _B_in["w1"],
        "B_b1": _B_in["b1"],
        "B_w2": _B_in["w2"],
        "B_b2": _B_in["b2"],
    }

def reference(A_x, A_k_cache, A_v_cache, A_wq, A_wo, B_x, B_w1, B_b1, B_w2, B_b2):
    def _A_ref(x, k_cache, v_cache, wq, wo):
        B, Sq, D = x.shape
        Hq, Dh = 16, 256
        Hkv = k_cache.shape[1]
        rep = Hq // Hkv
        q = (lambda x, *d: x.permute(*d))((x @ wq).reshape(B, Sq, Hq, Dh), 0, 2, 1, 3)
        k = (lambda x, n, axis: torch.repeat_interleave(x, n, dim=axis))(k_cache, rep, axis=1)
        v = (lambda x, n, axis: torch.repeat_interleave(x, n, dim=axis))(v_cache, rep, axis=1)
        scores = torch.einsum("bhqd,bhkd->bhqk", q, k) * (Dh ** -0.5)
        p = _softmax(scores, axis=-1)
        o = torch.einsum("bhqk,bhkd->bhqd", p, v)
        return (lambda x, *d: x.permute(*d))(o, 0, 2, 1, 3).reshape(B, Sq, Hq * Dh) @ wo

    def _B_ref(x, w1, b1, w2, b2):
        B, S, D = x.shape
        h = _layernorm(x, axis=-1)
        u = torch.einsum("bsd,sf->bdf", h, w1) + b1
        u = _gelu(u)
        y = torch.einsum("bdf,fs->bds", u, w2) + b2
        return (lambda x, *d: x.permute(*d))(y, 0, 2, 1)

    x = A_x
    h = x + _A_ref(_layernorm(x, axis=-1), A_k_cache, A_v_cache, A_wq, A_wo)
    h2 = h + _B_ref(_layernorm(h, axis=-1), B_w1, B_b1, B_w2, B_b2)
    return h2
```

```python
import sys

NAME = "sequential_preLN__gqa_block_cached__mixer_token_mlp__decode"
OUT = f"cdna_kernels/{NAME}.s"

WS_Q   = 0x0
WS_PO  = 0x10000
WS_PML = 0x90000
WS_OP  = 0xA0000
WS_END = 0xA0000 + 16*8*448*4

L = []
def e(s=""):
    L.append(s)
def lbl(s):
    L.append(s + ":")

C_SCALE = 0.0625 * 1.4426950408889634
import struct
def f2u(x):
    return struct.unpack("<I", struct.pack("<f", x))[0]
def hexf(x):
    return "0x%08x" % f2u(x)

DPPM = "row_mask:0xf bank_mask:0xf"

def wave_allreduce(v, t1, t2, op="add"):
    ins = {"add": "v_add_f32", "max": "v_max_f32"}[op]
    for mod in ["quad_perm:[1,0,3,2]", "quad_perm:[2,3,0,1]", "row_half_mirror", "row_mirror"]:
        e("s_nop 1")
        e(f"{ins}_dpp v{v}, v{v}, v{v} {mod} {DPPM}")
    for sw in ["v_permlane16_swap_b32", "v_permlane32_swap_b32"]:
        e(f"v_mov_b32 v{t1}, v{v}")
        e(f"v_mov_b32 v{t2}, v{v}")
        e("s_nop 1")
        e(f"{sw} v{t1}, v{t2}")
        e("s_nop 1")
        e(f"{ins} v{v}, v{t1}, v{t2}")

def srd(d, b, nbytes):
    e(f"s_mov_b32 s{d}, s{b}")
    e(f"s_and_b32 s{d+1}, s{b+1}, 0xffff")
    e(f"s_mov_b32 s{d+2}, {nbytes}")
    e(f"s_mov_b32 s{d+3}, 0x00020000")

def srd_off(d, b, off, nbytes):
    e(f"s_add_u32 s{d}, s{b}, {off}")
    e(f"s_addc_u32 s{d+1}, s{b+1}, 0")
    e(f"s_and_b32 s{d+1}, s{d+1}, 0xffff")
    e(f"s_mov_b32 s{d+2}, {nbytes}")
    e(f"s_mov_b32 s{d+3}, 0x00020000")

def round_bf16(v, t):
    e(f"v_cvt_pk_bf16_f32 v{t}, v{v}, v{v}")
    e(f"v_lshlrev_b32 v{v}, 16, v{t}")

def layernorm_wave(xs, n, t, eps=1e-5):
    s, a, b, m, c, d = t, t+1, t+2, t+3, t+4, t+5
    e(f"v_mov_b32 v{s}, v{xs[0]}")
    for x in xs[1:]:
        e(f"v_add_f32 v{s}, v{s}, v{x}")
    wave_allreduce(s, a, b)
    e(f"v_mul_f32 v{m}, {hexf(1.0/n)}, v{s}")
    e(f"v_sub_f32 v{c}, v{xs[0]}, v{m}")
    e(f"v_mul_f32 v{s}, v{c}, v{c}")
    for x in xs[1:]:
        e(f"v_sub_f32 v{c}, v{x}, v{m}")
        e(f"v_fmac_f32 v{s}, v{c}, v{c}")
    wave_allreduce(s, a, b)
    e(f"v_mul_f32 v{s}, {hexf(1.0/n)}, v{s}")
    round_bf16(m, a)
    round_bf16(s, a)
    e(f"v_add_f32 v{s}, {hexf(eps)}, v{s}")
    round_bf16(s, a)
    e(f"v_sqrt_f32 v{s}, v{s}")
    e("s_nop 0")
    round_bf16(s, a)
    e(f"v_rcp_f32 v{d}, v{s}")
    e("s_nop 0")
    for x in xs:
        e(f"v_sub_f32 v{x}, v{x}, v{m}")
        round_bf16(x, a)
        e(f"v_mul_f32 v{c}, v{x}, v{d}")
        e(f"v_fma_f32 v{a}, -v{c}, v{s}, v{x}")
        e(f"v_fma_f32 v{x}, v{a}, v{d}, v{c}")
        round_bf16(x, a)

def kernel_head(k):
    e(".text")
    e(f".globl {k}")
    e(".p2align 8")
    e(f".type {k},@function")
    lbl(k)

def kernel_desc(k, vgpr, sgpr=102):
    acc = (vgpr + 3)//4*4
    e('.section .rodata,"a"')
    e(".p2align 6")
    e(f".amdhsa_kernel {k}")
    e(f"  .amdhsa_next_free_vgpr {vgpr}")
    e(f"  .amdhsa_next_free_sgpr {sgpr}")
    e(f"  .amdhsa_accum_offset {acc}")
    e("  .amdhsa_group_segment_fixed_size 0")
    e("  .amdhsa_kernarg_size 104")
    e("  .amdhsa_user_sgpr_count 2")
    e("  .amdhsa_user_sgpr_kernarg_segment_ptr 1")
    e("  .amdhsa_system_sgpr_workgroup_id_x 1")
    e(".end_amdhsa_kernel")

def gen_k1():
    k = "k1_qproj_kernel"
    kernel_head(k)
    e("s_cmp_ge_u32 s2, 64")
    e("s_cbranch_scc1 K1_END")
    e("s_load_dwordx2 s[4:5], s[0:1], 0")
    e("s_load_dwordx2 s[6:7], s[0:1], 24")
    e("s_load_dwordx2 s[8:9], s[0:1], 96")
    e("v_lshrrev_b32 v5, 6, v0")
    e("v_and_b32 v1, 63, v0")
    e("v_readfirstlane_b32 s24, v5")
    e("v_and_b32 v2, 15, v1")
    e("v_lshrrev_b32 v3, 4, v1")
    e("s_mov_b32 s30, 0x05040100")
    e("s_mov_b32 s31, 0x07060302")
    e("s_waitcnt lgkmcnt(0)")
    srd(12, 4, 8*448*2)
    srd(16, 6, 448*4096*2)
    srd_off(20, 8, WS_Q, 8*4096*2)
    e("s_cmp_ge_u32 s24, 7")
    e("s_cbranch_scc1 K1_NOLOAD")
    e("v_lshlrev_b32 v4, 16, v3")
    e("v_lshl_add_u32 v4, v2, 3, v4")
    e("s_lshl_b32 s25, s24, 19")
    e("s_lshl_b32 s26, s2, 7")
    e("s_add_u32 s25, s25, s26")
    for st in range(2):
        for i in range(8):
            r = 16 + (st*8+i)*2
            e(f"s_add_u32 s26, s25, {(st*32+i)*8192}")
            e(f"buffer_load_dwordx2 v[{r}:{r+1}], v4, s[16:19], s26 offen")
    lbl("K1_NOLOAD")
    e("s_mul_i32 s25, s24, 896")
    e("v_lshlrev_b32 v6, 1, v1")
    xs = list(range(48, 55))
    for i in range(7):
        e(f"buffer_load_ushort v{xs[i]}, v6, s[12:15], s25 offen offset:{i*128}")
    e("s_waitcnt vmcnt(0)")
    for x in xs:
        e(f"v_lshlrev_b32 v{x}, 16, v{x}")
    layernorm_wave(xs, 448, 56)
    e("v_add_u32 v6, s25, v6")
    for i, x in enumerate(xs):
        e(f"v_lshrrev_b32 v{x}, 16, v{x}")
        e(f"ds_write_b16 v6, v{x} offset:{i*128}")
    e("s_waitcnt lgkmcnt(0)")
    e("s_barrier")
    e("s_cmp_ge_u32 s24, 7")
    e("s_cbranch_scc1 K1_RED")
    e("v_and_b32 v7, 7, v2")
    e("v_mul_u32_u24 v7, 896, v7")
    e("v_lshl_add_u32 v7, v3, 4, v7")
    e("s_lshl_b32 s25, s24, 7")
    e("v_add_u32 v7, s25, v7")
    e("ds_read_b128 v[48:51], v7")
    e("ds_read_b128 v[52:55], v7 offset:64")
    for st in range(2):
        for dw in range(2):
            for p in range(4):
                a = 16 + (st*8+2*p)*2 + dw
                b = 16 + (st*8+2*p+1)*2 + dw
                e(f"v_perm_b32 v{64+st*16+(2*dw)*4+p}, v{b}, v{a}, s30")
                e(f"v_perm_b32 v{64+st*16+(2*dw+1)*4+p}, v{b}, v{a}, s31")
    e("s_waitcnt lgkmcnt(0)")
    e("s_nop 1")
    for j in range(4):
        e(f"v_mfma_f32_16x16x32_bf16 v[{96+j*4}:{99+j*4}], v[48:51], v[{64+j*4}:{67+j*4}], 0")
    for j in range(4):
        e(f"v_mfma_f32_16x16x32_bf16 v[{96+j*4}:{99+j*4}], v[52:55], v[{80+j*4}:{83+j*4}], v[{96+j*4}:{99+j*4}]")
    e("v_lshlrev_b32 v7, 10, v3")
    e("v_lshl_add_u32 v7, v2, 4, v7")
    e("s_lshl_b32 s25, s24, 11")
    e("s_add_u32 s25, s25, 14336")
    e("v_add_u32 v7, s25, v7")
    e("v_cmp_gt_u32 vcc, 32, v1")
    e("s_and_saveexec_b64 s[26:27], vcc")
    e("s_nop 7")
    for r in range(4):
        for j in range(4):
            e(f"ds_write_b32 v7, v{96+j*4+r} offset:{r*256+j*4}")
    e("s_mov_b64 exec, s[26:27]")
    lbl("K1_RED")
    e("s_waitcnt lgkmcnt(0)")
    e("s_barrier")
    e("v_lshlrev_b32 v7, 2, v0")
    for w in range(7):
        e(f"ds_read_b32 v{16+w}, v7 offset:{14336 + w*2048}")
    e("s_waitcnt lgkmcnt(0)")
    for w in range(1, 7):
        e(f"v_add_f32 v16, v16, v{16+w}")
    e("v_cvt_pk_bf16_f32 v16, v16, v16")
    e("s_lshl_b32 s25, s24, 13")
    e("s_lshl_b32 s26, s2, 7")
    e("s_add_u32 s25, s25, s26")
    e("v_lshlrev_b32 v7, 1, v1")
    e("buffer_store_short v16, v7, s[20:23], s25 offen")
    lbl("K1_END")
    e("s_endpgm")
    return k, 112

KB, VB, TB, OB = 32, 96, 160, 192
QB = 2
SB = 10
PB = 18
VM, VL, VMC, VKO, VVO, VT1, VT2, VT3, VBP = 22, 23, 24, 25, 26, 27, 28, 29, 30
NT = " nt"

def k2_loads_K(soff):
    for i in range(8):
        for jj in range(2):
            r = KB + (i*2+jj)*4
            e(f"buffer_load_dwordx4 v[{r}:{r+3}], v{VKO}, s[12:15], s{soff} offen offset:{i*512+jj*256}{NT}")
def k2_loads_V(soff):
    for h in range(2):
        for i in range(8):
            r = VB + (h*8+i)*4
            e(f"buffer_load_dwordx4 v[{r}:{r+3}], v{VVO}, s[16:19], s{soff} offen offset:{i*512+h*256}{NT}")

def gen_k2():
    k = "k2_attn_kernel"
    NTILE = 8
    kernel_head(k)
    e("s_cmp_ge_u32 s2, 256")
    e("s_cbranch_scc1 K2_END")
    e("s_load_dwordx4 s[4:7], s[0:1], 8")
    e("s_load_dwordx2 s[8:9], s[0:1], 96")
    e("v_lshrrev_b32 v31, 6, v0")
    e("v_and_b32 v1, 63, v0")
    e("v_readfirstlane_b32 s24, v31")
    e("s_and_b32 s25, s2, 7")
    e("s_lshr_b32 s26, s2, 3")
    e("s_and_b32 s26, s26, 7")
    e("s_lshr_b32 s27, s2, 6")
    e("s_mov_b32 s30, 0x05040100")
    e("s_mov_b32 s31, 0x07060302")
    e(f"s_mov_b32 s32, {hexf(C_SCALE)}")
    e("s_lshl_b32 s28, s26, 3")
    e("s_add_u32 s28, s28, s25")
    e("s_lshl_b32 s28, s28, 22")
    e("s_lshl_b32 s29, s27, 20")
    e("s_add_u32 s28, s28, s29")
    e("s_lshl_b32 s29, s24, 17")
    e("s_add_u32 s28, s28, s29")
    e(f"v_and_b32 v{VT1}, 15, v1")
    e(f"v_lshrrev_b32 v{VT2}, 4, v1")
    e(f"v_lshrrev_b32 v{VT3}, 2, v{VT1}")
    e(f"v_lshlrev_b32 v{VKO}, 12, v{VT3}")
    e(f"v_lshl_add_u32 v{VKO}, v{VT2}, 6, v{VKO}")
    e(f"v_and_b32 v{VT3}, 3, v{VT1}")
    e(f"v_lshl_add_u32 v{VKO}, v{VT3}, 4, v{VKO}")
    e(f"v_lshlrev_b32 v{VVO}, 12, v{VT2}")
    e(f"v_lshl_add_u32 v{VVO}, v{VT1}, 4, v{VVO}")
    e(f"v_lshlrev_b32 v{VBP}, 4, v{VT2}")
    e(f"v_lshrrev_b32 v{VM}, 2, v{VT1}")
    e(f"v_lshlrev_b32 v{VM}, 9, v{VM}")
    e(f"v_lshl_add_u32 v{VM}, v{VT2}, 6, v{VM}")
    e(f"v_lshl_add_u32 v{VM}, v{VT3}, 4, v{VM}")
    e(f"v_mov_b32 v{VL}, 0x7f000000")
    e(f"v_cmp_gt_u32 vcc, 8, v{VT1}")
    e("s_nop 1")
    e(f"v_cndmask_b32 v{VM}, v{VL}, v{VM}, vcc")
    e("s_lshl_b32 s29, s26, 13")
    e("s_lshl_b32 s33, s25, 10")
    e("s_add_u32 s29, s29, s33")
    e("s_waitcnt lgkmcnt(0)")
    srd(12, 4, 0x10000000)
    srd(16, 6, 0x10000000)
    srd_off(20, 8, WS_Q, 8*4096*2)
    e(f"buffer_load_dwordx4 v[{QB}:{QB+3}], v{VM}, s[20:23], s29 offen")
    e(f"buffer_load_dwordx4 v[{QB+4}:{QB+7}], v{VM}, s[20:23], s29 offen offset:256")
    k2_loads_K(28)
    k2_loads_V(28)
    for r in range(64):
        e(f"v_mov_b32 v{OB+r}, 0")
    e(f"v_mov_b32 v{VM}, 0xff7fffff")
    e(f"v_mov_b32 v{VL}, 0")
    e(f"v_mov_b32 v{VMC}, 0")
    for t in range(NTILE):
        last = (t == NTILE-1)
        e(f"; ---------------- tile {t}")
        e("s_waitcnt vmcnt(16)")
        for jj in range(2):
            for i in range(8):
                d = TB + i*4
                kk = KB + (i*2+jj)*4
                c = "0" if jj == 0 else f"v[{d}:{d+3}]"
                e(f"v_mfma_f32_16x16x32_bf16 v[{d}:{d+3}], v[{kk}:{kk+3}], v[{QB+jj*4}:{QB+jj*4+3}], {c}")
        if not last:
            e(f"s_add_u32 s34, s28, {(t+1)*16384}")
            k2_loads_K(34)
        else:
            e("s_nop 7")
        for i in range(8):
            d = TB + i*4
            e(f"v_mov_b32_dpp v{SB+i}, v{d} quad_perm:[0,0,0,0] {DPPM}")
            e(f"v_add_f32_dpp v{SB+i}, v{d+1}, v{SB+i} quad_perm:[1,1,1,1] {DPPM}")
            e(f"v_add_f32_dpp v{SB+i}, v{d+2}, v{SB+i} quad_perm:[2,2,2,2] {DPPM}")
            e(f"v_add_f32_dpp v{SB+i}, v{d+3}, v{SB+i} quad_perm:[3,3,3,3] {DPPM}")
        for i in range(0, 8, 2):
            e(f"v_cvt_pk_bf16_f32 v{VT1}, v{SB+i}, v{SB+i+1}")
            e(f"v_lshlrev_b32 v{SB+i}, 16, v{VT1}")
            e(f"v_and_b32 v{SB+i+1}, 0xffff0000, v{VT1}")
        e(f"v_max3_f32 v{VT1}, v{SB}, v{SB+1}, v{SB+2}")
        e(f"v_max3_f32 v{VT1}, v{VT1}, v{SB+3}, v{SB+4}")
        e(f"v_max3_f32 v{VT1}, v{VT1}, v{SB+5}, v{SB+6}")
        e(f"v_max_f32 v{VT1}, v{VT1}, v{SB+7}")
        e(f"v_cmp_gt_f32 vcc, v{VT1}, v{VM}")
        e(f"s_cbranch_vccz K2_FAST{t}")
        for sw in ["v_permlane16_swap_b32", "v_permlane32_swap_b32"]:
            e(f"v_mov_b32 v{VT2}, v{VT1}")
            e(f"v_mov_b32 v{VT3}, v{VT1}")
            e("s_nop 1")
            e(f"{sw} v{VT2}, v{VT3}")
            e("s_nop 1")
            e(f"v_max_f32 v{VT1}, v{VT2}, v{VT3}")
        e(f"v_max_f32 v{VT1}, v{VT1}, v{VM}")
        e(f"v_sub_f32 v{VT2}, v{VM}, v{VT1}")
        e(f"v_mul_f32 v{VT2}, s32, v{VT2}")
        e(f"v_exp_f32 v{VT2}, v{VT2}")
        e(f"v_mov_b32 v{VM}, v{VT1}")
        e(f"v_mul_f32 v{VMC}, s32, v{VT1}")
        e(f"v_mul_f32 v{VL}, v{VL}, v{VT2}")
        e(f"ds_bpermute_b32 v{VT3}, v{VBP}, v{VT2}")
        e("s_waitcnt lgkmcnt(0)")
        for r in range(64):
            e(f"v_mul_f32 v{OB+r}, v{OB+r}, v{VT3}")
        lbl(f"K2_FAST{t}")
        for i in range(8):
            e(f"v_fma_f32 v{SB+i}, v{SB+i}, s32, -v{VMC}")
        for i in range(8):
            e(f"v_exp_f32 v{SB+i}, v{SB+i}")
        e("s_nop 0")
        for i in range(0, 8, 2):
            e(f"v_cvt_pk_bf16_f32 v{PB+i//2}, v{SB+i}, v{SB+i+1}")
        e(f"v_add_f32 v{VT1}, v{SB}, v{SB+1}")
        e(f"v_add_f32 v{VT2}, v{SB+2}, v{SB+3}")
        e(f"v_add_f32 v{VT3}, v{SB+4}, v{SB+5}")
        e(f"v_add_f32 v{VT1}, v{VT1}, v{VT2}")
        e(f"v_add_f32 v{VT2}, v{SB+6}, v{SB+7}")
        e(f"v_add_f32 v{VT3}, v{VT3}, v{VT2}")
        e(f"v_add_f32 v{VT1}, v{VT1}, v{VT3}")
        e(f"v_add_f32 v{VL}, v{VL}, v{VT1}")
        e("s_waitcnt vmcnt(0)" if last else "s_waitcnt vmcnt(16)")
        for h in range(2):
            for w in range(4):
                for p in range(4):
                    a = VB + (h*8+2*p)*4 + w
                    b = VB + (h*8+2*p+1)*4 + w
                    e(f"v_perm_b32 v{TB+(2*w)*4+p}, v{b}, v{a}, s30")
                    e(f"v_perm_b32 v{TB+(2*w+1)*4+p}, v{b}, v{a}, s31")
            if h == 1 and not last:
                k2_loads_V(34)
            else:
                e("s_nop 1")
            for j in range(8):
                o = OB + (h*8+j)*4
                e(f"v_mfma_f32_16x16x32_bf16 v[{o}:{o+3}], v[{PB}:{PB+3}], v[{TB+j*4}:{TB+j*4+3}], v[{o}:{o+3}]")
    for sw in ["v_permlane16_swap_b32", "v_permlane32_swap_b32"]:
        e(f"v_mov_b32 v{VT2}, v{VL}")
        e(f"v_mov_b32 v{VT3}, v{VL}")
        e("s_nop 1")
        e(f"{sw} v{VT2}, v{VT3}")
        e("s_nop 1")
        e(f"v_add_f32 v{VL}, v{VT2}, v{VT3}")
    e(f"v_and_b32 v{VT1}, 15, v1")
    e(f"v_lshrrev_b32 v{VT2}, 4, v1")
    e(f"v_lshlrev_b32 v{VT3}, 10, v{VT2}")
    e(f"v_lshl_add_u32 v{VT3}, v{VT1}, 5, v{VT3}")
    e("s_lshl_b32 s34, s24, 11")
    e(f"v_add_u32 v{VT3}, s34, v{VT3}")
    e("v_cmp_gt_u32 vcc, 32, v1")
    e("s_and_saveexec_b64 s[36:37], vcc")
    e("s_nop 4")
    for h in range(2):
        for j in range(8):
            e(f"ds_write_b32 v{VT3}, v{OB+(h*8+j)*4} offset:{(h*128+j)*4}")
    e("s_mov_b64 exec, s[36:37]")
    e(f"v_lshlrev_b32 v{VT3}, 1, v1")
    e("s_lshl_b32 s34, s24, 4")
    e("s_add_u32 s34, s34, 16384")
    e(f"v_add_u32 v{VT3}, s34, v{VT3}")
    e(f"v_and_b32 v{VT1}, 0xfb, v1")
    e(f"v_cmp_eq_u32 vcc, 0, v{VT1}")
    e("s_and_saveexec_b64 s[36:37], vcc")
    e(f"ds_write_b64 v{VT3}, v[{VM}:{VM+1}]")
    e("s_mov_b64 exec, s[36:37]")
    e("s_waitcnt lgkmcnt(0)")
    e("s_barrier")
    e("v_lshrrev_b32 v2, 8, v0")
    e("v_lshlrev_b32 v3, 3, v2")
    for w in range(8):
        e(f"ds_read_b64 v[{32+2*w}:{33+2*w}], v3 offset:{16384+w*16}")
    e("v_lshlrev_b32 v4, 2, v0")
    for w in range(8):
        e(f"ds_read_b32 v{48+w}, v4 offset:{w*2048}")
    e("s_waitcnt lgkmcnt(0)")
    e("v_max3_f32 v10, v32, v34, v36")
    e("v_max3_f32 v10, v10, v38, v40")
    e("v_max3_f32 v10, v10, v42, v44")
    e("v_max_f32 v10, v10, v46")
    for w in range(8):
        e(f"v_sub_f32 v{32+2*w}, v{32+2*w}, v10")
        e(f"v_mul_f32 v{32+2*w}, s32, v{32+2*w}")
        e(f"v_exp_f32 v{32+2*w}, v{32+2*w}")
    e("s_nop 0")
    e("v_mul_f32 v11, v32, v33")
    e("v_mul_f32 v7, v32, v48")
    for w in range(1, 8):
        e(f"v_fmac_f32 v11, v{32+2*w}, v{33+2*w}")
        e(f"v_fmac_f32 v7, v{32+2*w}, v{48+w}")
    srd_off(20, 8, WS_PO, 8*16*4*256*4)
    srd_off(40, 8, WS_PML, 8*16*4*2*4)
    e("s_lshl_b32 s34, s26, 4")
    e("s_lshl_b32 s35, s25, 1")
    e("s_add_u32 s34, s34, s35")
    e("s_lshl_b32 s34, s34, 2")
    e("s_add_u32 s34, s34, s27")
    e("s_lshl_b32 s35, s34, 10")
    e("v_and_b32 v8, 255, v0")
    e("v_lshlrev_b32 v9, 2, v8")
    e("v_lshl_add_u32 v9, v2, 12, v9")
    e("buffer_store_dword v7, v9, s[20:23], s35 offen")
    e("s_lshl_b32 s35, s34, 3")
    e("v_lshlrev_b32 v9, 5, v2")
    e("v_cmp_eq_u32 vcc, 0, v8")
    e("s_and_saveexec_b64 s[36:37], vcc")
    e("buffer_store_dwordx2 v[10:11], v9, s[40:43], s35 offen")
    lbl("K2_END")
    e("s_endpgm")
    return k, 256

def gen_k3():
    k = "k3_oproj_kernel"
    kernel_head(k)
    e("s_cmp_ge_u32 s2, 112")
    e("s_cbranch_scc1 K3_END")
    e("s_load_dwordx2 s[6:7], s[0:1], 32")
    e("s_load_dwordx2 s[8:9], s[0:1], 96")
    e("v_lshrrev_b32 v5, 6, v0")
    e("v_and_b32 v1, 63, v0")
    e("v_readfirstlane_b32 s24, v5")
    e("v_and_b32 v2, 15, v1")
    e("v_lshrrev_b32 v3, 4, v1")
    e("s_and_b32 s25, s2, 15")
    e("s_lshr_b32 s26, s2, 4")
    e("s_mov_b32 s30, 0x05040100")
    e("s_mov_b32 s31, 0x07060302")
    e(f"s_mov_b32 s32, {hexf(C_SCALE)}")
    e("s_waitcnt lgkmcnt(0)")
    srd(16, 6, 4096*448*2)
    srd_off(12, 8, WS_PO, 8*16*4*256*4)
    srd_off(40, 8, WS_PML, 8*16*4*2*4)
    srd_off(20, 8, WS_OP, 16*8*448*4)
    e("v_mul_u32_u24 v4, 7168, v3")
    e("v_lshl_add_u32 v4, v2, 3, v4")
    e("s_lshl_b32 s27, s25, 2")
    e("s_add_u32 s27, s27, s24")
    e("s_mul_i32 s27, s27, 57344")
    e("s_lshl_b32 s28, s26, 7")
    e("s_add_u32 s27, s27, s28")
    for st in range(2):
        for i in range(8):
            r = 16 + (st*8+i)*2
            e(f"s_add_u32 s28, s27, {(st*32+i)*896}")
            e(f"buffer_load_dwordx2 v[{r}:{r+1}], v4, s[16:19], s28 offen")
    e("v_lshlrev_b32 v6, 2, v0")
    e("s_lshl_b32 s27, s25, 12")
    for b in range(8):
        e(f"s_add_u32 s28, s27, {b*65536}")
        for s in range(4):
            e(f"buffer_load_dword v{64+b*4+s}, v6, s[12:15], s28 offen offset:{s*1024}")
    e("v_lshrrev_b32 v7, 2, v1")
    e("v_lshlrev_b32 v7, 9, v7")
    e("v_and_b32 v8, 3, v1")
    e("v_lshl_add_u32 v7, v8, 3, v7")
    e("s_lshl_b32 s27, s25, 5")
    e("v_mov_b32 v9, 0x7f000000")
    e("v_cmp_gt_u32 vcc, 32, v1")
    e("s_nop 1")
    e("v_cndmask_b32 v7, v9, v7, vcc")
    e("buffer_load_dwordx2 v[10:11], v7, s[40:43], s27 offen")
    e("s_waitcnt vmcnt(0)")
    e("v_mov_b32 v12, v10")
    e("s_nop 1")
    e(f"v_max_f32_dpp v12, v12, v12 quad_perm:[1,0,3,2] {DPPM}")
    e("s_nop 1")
    e(f"v_max_f32_dpp v12, v12, v12 quad_perm:[2,3,0,1] {DPPM}")
    e("v_sub_f32 v12, v10, v12")
    e("v_mul_f32 v12, s32, v12")
    e("v_exp_f32 v12, v12")
    e("s_nop 0")
    e("v_mul_f32 v13, v12, v11")
    e("s_nop 1")
    e(f"v_add_f32_dpp v13, v13, v13 quad_perm:[1,0,3,2] {DPPM}")
    e("s_nop 1")
    e(f"v_add_f32_dpp v13, v13, v13 quad_perm:[2,3,0,1] {DPPM}")
    e("v_rcp_f32 v14, v13")
    e("s_nop 0")
    e("v_mul_f32 v12, v12, v14")
    e("s_nop 0")
    for b in range(8):
        for s in range(4):
            e(f"v_readlane_b32 s{44+b*4+s}, v12, {b*4+s}")
    e("s_nop 1")
    e("v_lshlrev_b32 v7, 1, v0")
    for b in range(8):
        e(f"v_mul_f32 v8, s{44+b*4}, v{64+b*4}")
        for s in range(1, 4):
            e(f"v_fmac_f32 v8, s{44+b*4+s}, v{64+b*4+s}")
        e("v_cvt_pk_bf16_f32 v8, v8, v8")
        e(f"ds_write_b16 v7, v8 offset:{b*512}")
    e("s_waitcnt lgkmcnt(0)")
    e("s_barrier")
    e("v_and_b32 v7, 7, v2")
    e("v_lshlrev_b32 v7, 9, v7")
    e("v_lshl_add_u32 v7, v3, 4, v7")
    e("s_lshl_b32 s27, s24, 7")
    e("v_add_u32 v7, s27, v7")
    e("ds_read_b128 v[48:51], v7")
    e("ds_read_b128 v[52:55], v7 offset:64")
    for st in range(2):
        for dw in range(2):
            for p in range(4):
                a = 16 + (st*8+2*p)*2 + dw
                b = 16 + (st*8+2*p+1)*2 + dw
                e(f"v_perm_b32 v{64+st*16+(2*dw)*4+p}, v{b}, v{a}, s30")
                e(f"v_perm_b32 v{64+st*16+(2*dw+1)*4+p}, v{b}, v{a}, s31")
    e("s_waitcnt lgkmcnt(0)")
    e("s_nop 1")
    for j in range(4):
        e(f"v_mfma_f32_16x16x32_bf16 v[{96+j*4}:{99+j*4}], v[48:51], v[{64+j*4}:{67+j*4}], 0")
    for j in range(4):
        e(f"v_mfma_f32_16x16x32_bf16 v[{96+j*4}:{99+j*4}], v[52:55], v[{80+j*4}:{83+j*4}], v[{96+j*4}:{99+j*4}]")
    e("v_lshlrev_b32 v7, 10, v3")
    e("v_lshl_add_u32 v7, v2, 4, v7")
    e("s_lshl_b32 s27, s24, 11")
    e("s_add_u32 s27, s27, 4096")
    e("v_add_u32 v7, s27, v7")
    e("v_cmp_gt_u32 vcc, 32, v1")
    e("s_and_saveexec_b64 s[36:37], vcc")
    e("s_nop 7")
    for r in range(4):
        for j in range(4):
            e(f"ds_write_b32 v7, v{96+j*4+r} offset:{r*256+j*4}")
    e("s_mov_b64 exec, s[36:37]")
    e("s_waitcnt lgkmcnt(0)")
    e("s_barrier")
    e("v_lshlrev_b32 v7, 2, v0")
    for half in range(2):
        for w in range(4):
            e(f"ds_read_b32 v{16+half*4+w}, v7 offset:{4096 + w*2048 + half*1024}")
    e("s_waitcnt lgkmcnt(0)")
    e("s_mul_i32 s27, s25, 14336")
    e("s_mul_i32 s28, s24, 1792")
    e("s_add_u32 s27, s27, s28")
    e("s_lshl_b32 s28, s26, 8")
    e("s_add_u32 s27, s27, s28")
    e("v_lshlrev_b32 v7, 2, v1")
    for half in range(2):
        b0 = 16+half*4
        e(f"v_add_f32 v{b0}, v{b0}, v{b0+1}")
        e(f"v_add_f32 v{b0+2}, v{b0+2}, v{b0+3}")
        e(f"v_add_f32 v{b0}, v{b0}, v{b0+2}")
        e(f"s_add_u32 s28, s27, {half*4*1792}")
        e(f"buffer_store_dword v{b0}, v7, s[20:23], s28 offen")
    lbl("K3_END")
    e("s_endpgm")
    return k, 112

def gen_k4():
    k = "k4_mlp_kernel"
    kernel_head(k)
    e("s_cmp_ge_u32 s2, 256")
    e("s_cbranch_scc1 K4_END")
    e("s_load_dwordx2 s[4:5], s[0:1], 0")
    e("s_load_dwordx4 s[44:47], s[0:1], 48")
    e("s_load_dwordx4 s[48:51], s[0:1], 64")
    e("s_load_dwordx2 s[6:7], s[0:1], 80")
    e("s_load_dwordx2 s[8:9], s[0:1], 96")
    e("v_lshrrev_b32 v5, 6, v0")
    e("v_and_b32 v1, 63, v0")
    e("v_readfirstlane_b32 s24, v5")
    e("s_lshr_b32 s25, s2, 5")
    e("s_and_b32 s26, s2, 31")
    e("s_waitcnt lgkmcnt(0)")
    srd(12, 4, 8*448*2)
    srd(16, 6, 8*448*2)
    srd_off(20, 8, WS_OP, 16*8*448*4)
    srd(52, 44, 3584)
    srd(56, 46, 3584)
    srd(60, 48, 3584)
    srd(64, 50, 2)
    e("v_lshlrev_b32 v6, 2, v0")
    e("s_mul_i32 s27, s25, 1792")
    for p in range(16):
        e(f"s_add_u32 s28, s27, {p*14336}")
        e(f"buffer_load_dword v{16+p}, v6, s[20:23], s28 offen")
    e("v_lshlrev_b32 v7, 1, v0")
    e("s_mul_i32 s27, s25, 896")
    e("buffer_load_ushort v32, v7, s[12:15], s27 offen")
    e("v_mov_b32 v8, 0")
    e("buffer_load_ushort v33, v8, s[64:67], 0 offen")
    e("v_mul_u32_u24 v8, 56, v1")
    for a, (base, sr) in enumerate([(64, 52), (78, 56), (92, 60)]):
        for i in range(7):
            e(f"buffer_load_dwordx2 v[{base+2*i}:{base+2*i+1}], v8, s[{sr}:{sr+3}], 0 offen offset:{i*8}")
    e("s_waitcnt vmcnt(21)")
    for p in range(1, 16):
        e(f"v_add_f32 v16, v16, v{16+p}")
    round_bf16(16, 17)
    e("v_lshlrev_b32 v32, 16, v32")
    e("v_add_f32 v16, v16, v32")
    round_bf16(16, 17)
    e("ds_write_b32 v6, v16")
    e("s_waitcnt lgkmcnt(0)")
    e("s_barrier")
    e("v_lshlrev_b32 v6, 2, v1")
    xs = list(range(16, 23))
    for i in range(7):
        e(f"ds_read_b32 v{xs[i]}, v6 offset:{i*256}")
    e("s_mul_i32 s27, s26, 14")
    e("s_lshl_b32 s28, s24, 1")
    e("s_add_u32 s27, s27, s28")
    e("s_lshl_b32 s28, s27, 2")
    e("v_mov_b32 v7, s28")
    e("ds_read_b64 v[34:35], v7")
    e("s_waitcnt lgkmcnt(0)")
    layernorm_wave(xs, 448, 24)
    layernorm_wave(xs, 448, 24)
    e("s_and_b32 s28, s27, 63")
    e("s_lshr_b32 s29, s27, 6")
    e("s_add_u32 s33, s27, 1")
    e("s_and_b32 s34, s33, 63")
    e("s_lshr_b32 s35, s33, 6")
    e("v_mov_b32 v36, v16")
    e("v_mov_b32 v37, v16")
    for i in range(1, 7):
        e(f"s_cmp_eq_u32 s29, {i}")
        e("s_cselect_b64 s[36:37], -1, 0")
        e(f"v_cndmask_b32 v36, v36, v{16+i}, s[36:37]")
        e(f"s_cmp_eq_u32 s35, {i}")
        e("s_cselect_b64 s[36:37], -1, 0")
        e(f"v_cndmask_b32 v37, v37, v{16+i}, s[36:37]")
    e("s_nop 1")
    e("v_readlane_b32 s40, v36, s28")
    e("v_readlane_b32 s41, v37, s34")
    e("s_waitcnt vmcnt(0)")
    for (src, dst) in [(64, 112), (78, 140), (92, 168)]:
        for i in range(14):
            e(f"v_lshlrev_b32 v{dst+2*i}, 16, v{src+i}")
            e(f"v_and_b32 v{dst+2*i+1}, 0xffff0000, v{src+i}")
    k1 = -2.0*0.7978845608028654*1.4426950408889634
    k2 = k1*0.044715
    e(f"s_mov_b32 s42, {hexf(k1)}")
    e(f"s_mov_b32 s43, {hexf(k2)}")
    e("v_mov_b32 v40, 0")
    e("v_mov_b32 v41, 0")
    e("v_mov_b32 v42, s42")
    for i in range(28):
        for o in range(2):
            u, a = 44+o*4, 45+o*4
            e(f"v_fma_f32 v{u}, s{40+o}, v{112+i}, v{140+i}")
            e(f"v_mul_f32 v{a}, v{u}, v{u}")
            e(f"v_fma_f32 v{a}, s43, v{a}, v42")
            e(f"v_mul_f32 v{a}, v{a}, v{u}")
        for o in range(2):
            a = 45+o*4
            e(f"v_exp_f32 v{a}, v{a}")
        for o in range(2):
            a = 45+o*4
            e(f"v_add_f32 v{a}, 1.0, v{a}")
        for o in range(2):
            a = 45+o*4
            e(f"v_rcp_f32 v{a}, v{a}")
        for o in range(2):
            u = 44+o*4
            e(f"v_mul_f32 v{u}, v{u}, v{168+i}")
        for o in range(2):
            u, a = 44+o*4, 45+o*4
            e(f"v_fmac_f32 v{40+o}, v{u}, v{a}")
    wave_allreduce(40, 44, 45)
    wave_allreduce(41, 44, 45)
    e("v_lshlrev_b32 v33, 16, v33")
    for o in range(2):
        round_bf16(40+o, 44)
        e(f"v_add_f32 v{40+o}, v{40+o}, v33")
        round_bf16(40+o, 44)
        e(f"v_add_f32 v{40+o}, v{40+o}, v{34+o}")
    e("v_cvt_pk_bf16_f32 v40, v40, v41")
    e("s_mul_i32 s28, s25, 448")
    e("s_add_u32 s28, s28, s27")
    e("s_lshl_b32 s28, s28, 1")
    e("v_mov_b32 v7, 0")
    e("v_cmp_eq_u32 vcc, 0, v1")
    e("s_and_saveexec_b64 s[36:37], vcc")
    e("buffer_store_dword v40, v7, s[16:19], s28 offen")
    lbl("K4_END")
    e("s_endpgm")
    return k, 196

def main():
    hdr = open(f"cdna_kernels/{NAME}.s.ref").read().split("\n")
    head = [h for h in hdr if h.startswith(";") and "@launch" not in h and "Override launch" not in h and "grid=ceil" not in h]
    for h in head:
        e(h)
    e("; @launch kernel=k1_qproj_kernel grid=(64,1,1) block=(512,1,1) lds=28672")
    e("; @launch kernel=k2_attn_kernel grid=(256,1,1) block=(512,1,1) lds=16512")
    e("; @launch kernel=k3_oproj_kernel grid=(112,1,1) block=(256,1,1) lds=12288")
    e("; @launch kernel=k4_mlp_kernel grid=(256,1,1) block=(448,1,1) lds=1792")
    e('.amdgcn_target "amdgcn-amd-amdhsa--gfx950"')
    ks = [gen_k1(), gen_k2(), gen_k3(), gen_k4()]
    for k, v in ks:
        kernel_desc(k, v)
    open(OUT, "w").write("\n".join(L) + "\n")
    print("wrote", OUT, len(L), "lines")

main()
```

```python
import sys, struct
NAME = "sequential_preLN__gqa_block_cached__mixer_token_mlp__decode"
OUT = sys.argv[1] if len(sys.argv) > 1 else f"cdna_kernels/{NAME}.s"
STAMP = len(sys.argv) > 2 and sys.argv[2] == "stamp"

WS_QG = 0x0
WS_PG = 0x20000
PG_STRIDE = 258*16
WS_OG = 0x130000
WS_CNT = 0x170000
L_WOQ = 0
L_XN  = 114688
L_QL  = L_XN + 7168
L_CMB = L_QL + 1024
L_ML  = L_CMB + 16384
L_OL  = L_ML + 128
L_H   = L_OL + 4096
L_NON = L_H + 1792
L_ML2 = L_NON + 16
L_END = L_ML2 + 64

L = []
def e(s=""): L.append(s)
def lbl(s): L.append(s + ":")
C_SCALE = 0.0625 * 1.4426950408889634
def f2u(x): return struct.unpack("<I", struct.pack("<f", x))[0]
def hexf(x): return "0x%08x" % f2u(x)
DPPM = "row_mask:0xf bank_mask:0xf"
nstamp = [0]
def stamp():
    if STAMP:
        n = nstamp[0]; nstamp[0] += 1
        e(f"s_memrealtime s[{80+2*n}:{81+2*n}]")

def wave_allreduce(v, t1, t2, op="add"):
    ins = {"add": "v_add_f32", "max": "v_max_f32"}[op]
    for mod in ["quad_perm:[1,0,3,2]", "quad_perm:[2,3,0,1]", "row_half_mirror", "row_mirror"]:
        e("s_nop 1")
        e(f"{ins}_dpp v{v}, v{v}, v{v} {mod} {DPPM}")
    for sw in ["v_permlane16_swap_b32", "v_permlane32_swap_b32"]:
        e(f"v_mov_b32 v{t1}, v{v}")
        e(f"v_mov_b32 v{t2}, v{v}")
        e("s_nop 1")
        e(f"{sw} v{t1}, v{t2}")
        e("s_nop 1")
        e(f"{ins} v{v}, v{t1}, v{t2}")

def srd(d, b, nbytes, off=0):
    if off:
        e(f"s_add_u32 s{d}, s{b}, {off}")
        e(f"s_addc_u32 s{d+1}, s{b+1}, 0")
        e(f"s_and_b32 s{d+1}, s{d+1}, 0xffff")
    else:
        e(f"s_mov_b32 s{d}, s{b}")
        e(f"s_and_b32 s{d+1}, s{b+1}, 0xffff")
    e(f"s_mov_b32 s{d+2}, {nbytes}")
    e(f"s_mov_b32 s{d+3}, 0x00020000")

def round_bf16(v, t):
    e(f"v_cvt_pk_bf16_f32 v{t}, v{v}, v{v}")
    e(f"v_lshlrev_b32 v{v}, 16, v{t}")

def layernorm_wave(xs, n, t, eps=1e-5):
    s, a, b, m, c, d = t, t+1, t+2, t+3, t+4, t+5
    e(f"v_mov_b32 v{s}, v{xs[0]}")
    for x in xs[1:]:
        e(f"v_add_f32 v{s}, v{s}, v{x}")
    wave_allreduce(s, a, b)
    e(f"v_mul_f32 v{m}, {hexf(1.0/n)}, v{s}")
    e(f"v_sub_f32 v{c}, v{xs[0]}, v{m}")
    e(f"v_mul_f32 v{s}, v{c}, v{c}")
    for x in xs[1:]:
        e(f"v_sub_f32 v{c}, v{x}, v{m}")
        e(f"v_fmac_f32 v{s}, v{c}, v{c}")
    wave_allreduce(s, a, b)
    e(f"v_mul_f32 v{s}, {hexf(1.0/n)}, v{s}")
    round_bf16(m, a)
    round_bf16(s, a)
    e(f"v_add_f32 v{s}, {hexf(eps)}, v{s}")
    round_bf16(s, a)
    e(f"v_sqrt_f32 v{s}, v{s}")
    e("s_nop 0")
    round_bf16(s, a)
    e(f"v_rcp_f32 v{d}, v{s}")
    e("s_nop 0")
    for x in xs:
        e(f"v_sub_f32 v{x}, v{x}, v{m}")
        round_bf16(x, a)
        e(f"v_mul_f32 v{c}, v{x}, v{d}")
        e(f"v_fma_f32 v{a}, -v{c}, v{s}, v{x}")
        e(f"v_fma_f32 v{x}, v{a}, v{d}, v{c}")
        round_bf16(x, a)

KB, VB, TB, OB = 32, 96, 160, 192
QB, SB, PB = 2, 10, 18
VM, VL, VMC, VKO, VVO, VT1, VT2, VT3, VBP, VT4 = 22, 23, 24, 25, 26, 27, 28, 29, 30, 31
NT = " nt"
S_WAVE, S_HKV, S_B, S_SPLIT, S_PAIR, S_BASE, S_CNT, S_SLO, S_SHI, S_C = 3, 60, 61, 62, 63, 64, 65, 66, 67, 68
S_N = 78
S_PB = 15
VAT, VZ = 31, 1+0
S_CO = 14

def loads_K():
    for i in range(8):
        for jj in range(2):
            r = KB + (i*2+jj)*4
            e(f"buffer_load_dwordx4 v[{r}:{r+3}], v{VKO}, s[32:35], s{S_BASE} offen offset:{i*512+jj*256}{NT}")
def loads_V():
    for h in range(2):
        for i in range(8):
            r = VB + (h*8+i)*4
            e(f"buffer_load_dwordx4 v[{r}:{r+3}], v{VVO}, s[36:39], s{S_BASE} offen offset:{i*512+h*256}{NT}")

def poll(tag, issue, gregs, sleep=4):
    lbl(f"{tag}_RETRY")
    issue()
    e("s_waitcnt vmcnt(0)")
    e("s_mov_b64 s[72:73], exec")
    for g in gregs:
        e(f"v_cmp_eq_u64 vcc, s[{S_N}:{S_N+1}], v[{g+2}:{g+3}]")
        e("s_and_b64 s[72:73], s[72:73], vcc")
    e("s_cmp_eq_u64 s[72:73], exec")
    e(f"s_cbranch_scc1 {tag}_OK")
    e(f"s_sleep {sleep}")
    e(f"s_branch {tag}_RETRY")
    lbl(f"{tag}_OK")

def gen():
    k = f"{NAME}_kernel"
    e(".text"); e(f".globl {k}"); e(".p2align 8"); e(f".type {k},@function"); lbl(k)
    stamp()
    e("s_cmp_ge_u32 s2, 256")
    e("s_cbranch_scc1 L_END")
    e("s_load_dwordx8 s[4:11], s[0:1], 0")
    e("s_load_dwordx2 s[12:13], s[0:1], 32")
    e("s_load_dwordx8 s[16:23], s[0:1], 48")
    e("s_load_dwordx4 s[24:27], s[0:1], 80")
    e("s_load_dwordx2 s[28:29], s[0:1], 96")
    e("s_memrealtime s[74:75]")
    e(f"v_lshrrev_b32 v{VT4}, 6, v0")
    e("v_and_b32 v1, 63, v0")
    e(f"v_readfirstlane_b32 s{S_WAVE}, v{VT4}")
    e(f"s_lshr_b32 s{S_PAIR}, s2, 2")
    e(f"s_and_b32 s{S_SPLIT}, s2, 3")
    e(f"s_and_b32 s{S_HKV}, s{S_PAIR}, 7")
    e(f"s_lshr_b32 s{S_B}, s{S_PAIR}, 3")
    e(f"s_mov_b32 s{S_SLO}, 0x05040100")
    e(f"s_mov_b32 s{S_SHI}, 0x07060302")
    e(f"s_mov_b32 s{S_C}, {hexf(C_SCALE)}")
    e(f"s_lshl_b32 s{S_PB}, s{S_PAIR}, 22")
    e(f"s_lshl_b32 s69, s{S_SPLIT}, 17")
    e(f"s_add_u32 s{S_BASE}, s{S_PB}, s69")
    e(f"s_lshl_b32 s69, s{S_WAVE}, 14")
    e(f"s_add_u32 s{S_BASE}, s{S_BASE}, s69")
    e(f"v_and_b32 v{VT1}, 15, v1")
    e(f"v_lshrrev_b32 v{VT2}, 4, v1")
    e(f"v_lshrrev_b32 v{VT3}, 2, v{VT1}")
    e(f"v_lshlrev_b32 v{VKO}, 12, v{VT3}")
    e(f"v_lshl_add_u32 v{VKO}, v{VT2}, 6, v{VKO}")
    e(f"v_and_b32 v{VT3}, 3, v{VT1}")
    e(f"v_lshl_add_u32 v{VKO}, v{VT3}, 4, v{VKO}")
    e(f"v_lshlrev_b32 v{VVO}, 12, v{VT2}")
    e(f"v_lshl_add_u32 v{VVO}, v{VT1}, 4, v{VVO}")
    e(f"v_lshlrev_b32 v{VBP}, 4, v{VT2}")
    e("s_waitcnt lgkmcnt(0)")
    srd(32, 6, 0x10000000)
    srd(36, 8, 0x10000000)
    srd(40, 4, 8*448*2)
    srd(44, 10, 448*4096*2)
    srd(48, 26, 256)
    e(f"s_mul_i32 s69, s{S_WAVE}, 896")
    e(f"v_lshlrev_b32 v{VT3}, 1, v1")
    xs = list(range(10, 17))
    for i in range(7):
        e(f"buffer_load_ushort v{xs[i]}, v{VT3}, s[40:43], s69 offen offset:{i*128}")
    e(f"s_lshl_b32 s70, s{S_SPLIT}, 3")
    e(f"s_add_u32 s77, s70, s{S_B}")
    e(f"s_cmp_eq_u32 s{S_WAVE}, 7")
    e("s_cbranch_scc1 L_NONCE")
    e(f"v_lshrrev_b32 v{VT4}, 3, v1")
    e(f"v_lshlrev_b32 v{VT4}, 16, v{VT4}")
    e(f"v_and_b32 v{VT3}, 7, v1")
    e(f"v_lshl_add_u32 v{VT4}, v{VT3}, 2, v{VT4}")
    e("s_lshl_b32 s70, s77, 5")
    e(f"s_lshl_b32 s71, s{S_HKV}, 10")
    e("s_add_u32 s70, s70, s71")
    e(f"s_lshl_b32 s71, s{S_WAVE}, 19")
    e("s_add_u32 s71, s71, s70")
    for i in range(8):
        e(f"buffer_load_dword v{160+i}, v{VT4}, s[44:47], s71 offen")
        e("s_add_u32 s71, s71, 8192")
    e("s_waitcnt vmcnt(8)")
    e("s_branch L_LN")
    lbl("L_NONCE")
    e("s_or_b32 s74, s74, 1")
    e("v_mov_b32 v160, s74")
    e("v_mov_b32 v161, s75")
    e("v_mov_b32 v162, 0")
    e("v_mov_b32 v163, 0")
    e("v_mov_b32 v164, 0")
    e("s_cmp_ge_u32 s2, 8")
    e("s_cbranch_scc1 L_NOCAS")
    e("s_mov_b64 exec, 1")
    e("buffer_atomic_cmpswap_x2 v[160:163], v164, s[48:51], 0 offen")
    e("s_mov_b64 exec, -1")
    e("s_waitcnt vmcnt(1)")
    e("s_branch L_LN")
    lbl("L_NOCAS")
    e("s_waitcnt vmcnt(0)")
    lbl("L_LN")
    stamp()
    for x in xs:
        e(f"v_lshlrev_b32 v{x}, 16, v{x}")
    layernorm_wave(xs, 448, 2)
    e(f"v_lshlrev_b32 v{VT3}, 1, v1")
    e(f"s_add_u32 s69, s69, {L_XN}")
    e(f"v_add_u32 v{VT3}, s69, v{VT3}")
    for i, x in enumerate(xs):
        e(f"v_lshrrev_b32 v{x}, 16, v{x}")
        e(f"ds_write_b16 v{VT3}, v{x} offset:{i*128}")
    e(f"v_and_b32 v{VT3}, 7, v1")
    e(f"v_mul_u32_u24 v{VT3}, 896, v{VT3}")
    e(f"v_lshrrev_b32 v{VT4}, 3, v1")
    e(f"v_lshl_add_u32 v{VT3}, v{VT4}, 4, v{VT3}")
    e(f"s_lshl_b32 s69, s{S_WAVE}, 7")
    e(f"s_add_u32 s69, s69, {L_XN}")
    e(f"v_add_u32 v{VT3}, s69, v{VT3}")
    e("s_waitcnt lgkmcnt(0)")
    e("s_barrier")
    e(f"s_cmp_eq_u32 s{S_WAVE}, 7")
    e("s_cbranch_scc1 L_NONCE2")
    e(f"ds_read_b128 v[2:5], v{VT3}")
    e("s_waitcnt vmcnt(0)")
    for p in range(4):
        e(f"v_perm_b32 v{168+p}, v{161+2*p}, v{160+2*p}, s{S_SLO}")
        e(f"v_perm_b32 v{172+p}, v{161+2*p}, v{160+2*p}, s{S_SHI}")
    e(f"v_lshrrev_b32 v{VT3}, 4, v1")
    e(f"v_lshlrev_b32 v{VT3}, 8, v{VT3}")
    e(f"v_and_b32 v{VT4}, 7, v1")
    e(f"v_lshl_add_u32 v{VT3}, v{VT4}, 3, v{VT3}")
    e(f"s_lshl_b32 s69, s{S_WAVE}, 10")
    e(f"s_add_u32 s69, s69, {L_CMB}")
    e(f"v_add_u32 v{VT3}, s69, v{VT3}")
    e(f"v_lshrrev_b32 v{VT4}, 5, v1")
    e(f"v_bfe_u32 v6, v1, 3, 1")
    e(f"v_cmp_eq_u32 vcc, v{VT4}, v6")
    e("s_waitcnt lgkmcnt(0)")
    e("v_mfma_f32_16x16x32_bf16 v[176:179], v[2:5], v[168:171], 0")
    e("v_mfma_f32_16x16x32_bf16 v[180:183], v[2:5], v[172:175], 0")
    e("s_and_saveexec_b64 s[72:73], vcc")
    e("s_nop 7")
    for r in range(4):
        e(f"v_mov_b32 v6, v{176+r}")
        e(f"v_mov_b32 v7, v{180+r}")
        e(f"ds_write_b64 v{VT3}, v[6:7] offset:{r*64}")
    e("s_mov_b64 exec, s[72:73]")
    e("s_branch L_QRED")
    lbl("L_NONCE2")
    e("buffer_load_dwordx2 v[2:3], v164, s[48:51], 0 offen sc1")
    e("s_waitcnt vmcnt(0)")
    e("v_readfirstlane_b32 s70, v2")
    e("v_readfirstlane_b32 s71, v3")
    e("s_cmp_eq_u64 s[70:71], 0")
    e("s_cbranch_scc1 L_NONCE2")
    e(f"v_mov_b32 v4, {L_NON}")
    e("ds_write_b64 v4, v[2:3]")
    lbl("L_QRED")
    e("s_waitcnt lgkmcnt(0)")
    e("s_barrier")
    stamp()
    e(f"v_mov_b32 v4, {L_NON}")
    e("ds_read_b64 v[2:3], v4")
    e("s_waitcnt lgkmcnt(0)")
    e(f"v_readfirstlane_b32 s{S_N}, v2")
    e(f"v_readfirstlane_b32 s{S_N+1}, v3")
    e(f"s_cmp_lg_u32 s{S_WAVE}, 0")
    e("s_cbranch_scc1 L_JOIN")
    e(f"v_lshlrev_b32 v{VT3}, 3, v1")
    e(f"v_add_u32 v{VT3}, {L_CMB}, v{VT3}")
    for i in range(14):
        e(f"ds_read_b64 v[{32+2*i}:{33+2*i}], v{VT3} offset:{i*512}")
    srd(40, 28, 64*128*16, WS_QG)
    e(f"v_lshrrev_b32 v{VT3}, 3, v1")
    e(f"v_lshlrev_b32 v{VT3}, 14, v{VT3}")
    e(f"v_and_b32 v{VT4}, 7, v1")
    e(f"v_lshl_add_u32 v{VT3}, v{VT4}, 3, v{VT3}")
    e(f"s_lshl_b32 s69, s{S_HKV}, 11")
    e("s_lshl_b32 s70, s77, 6")
    e("s_add_u32 s69, s69, s70")
    e(f"v_mov_b32 v14, s{S_N}")
    e(f"v_mov_b32 v15, s{S_N+1}")
    e(f"s_cmp_lg_u32 s{S_SPLIT}, 0")
    e("s_cbranch_scc1 L_NOINIT")
    srd(44, 28, 64*256, WS_CNT)
    e(f"s_lshl_b32 s70, s{S_PAIR}, 8")
    e("v_mov_b32 v12, 32")
    e("v_mov_b32 v13, 0")
    e("s_mov_b64 exec, 1")
    e("buffer_store_dword v12, v13, s[44:47], s70 offen sc1")
    e("s_mov_b64 exec, -1")
    e("s_waitcnt vmcnt(0)")
    lbl("L_NOINIT")
    e("s_waitcnt lgkmcnt(0)")
    for i in range(1, 14):
        e(f"v_add_f32 v32, v32, v{32+2*i}")
        e(f"v_add_f32 v33, v33, v{33+2*i}")
    e("v_cvt_pk_bf16_f32 v12, v32, v33")
    e("s_nop 1")
    e(f"v_mov_b32_dpp v13, v12 quad_perm:[1,0,3,2] {DPPM}")
    e("s_mov_b32 exec_lo, 0x55555555")
    e("s_mov_b32 exec_hi, 0x55555555")
    e(f"buffer_store_dwordx4 v[12:15], v{VT3}, s[40:43], s69 offen sc1")
    e("s_mov_b64 exec, -1")
    stamp()
    e(f"v_lshlrev_b32 v{VT3}, 4, v1")
    e(f"s_lshl_b32 s69, s{S_PAIR}, 11")
    def iss():
        e(f"buffer_load_dwordx4 v[32:35], v{VT3}, s[40:43], s69 offen sc1")
        e(f"buffer_load_dwordx4 v[36:39], v{VT3}, s[40:43], s69 offen offset:1024 sc1")
    poll("L_H0", iss, [32, 36], sleep=2)
    stamp()
    e(f"v_lshlrev_b32 v{VT3}, 3, v1")
    e(f"v_add_u32 v{VT3}, {L_QL}, v{VT3}")
    e(f"ds_write_b64 v{VT3}, v[32:33]")
    e(f"ds_write_b64 v{VT3}, v[36:37] offset:512")
    e("s_waitcnt lgkmcnt(0)")
    lbl("L_JOIN")
    e("s_barrier")
    stamp()
    e(f"v_and_b32 v{VT1}, 15, v1")
    e(f"v_lshrrev_b32 v{VT2}, 4, v1")
    e(f"v_and_b32 v{VT3}, 7, v{VT1}")
    e(f"v_lshrrev_b32 v{VT4}, 2, v{VT3}")
    e(f"v_lshlrev_b32 v{VT4}, 9, v{VT4}")
    e(f"v_lshl_add_u32 v{VT4}, v{VT2}, 6, v{VT4}")
    e(f"v_and_b32 v{VT3}, 3, v{VT1}")
    e(f"v_lshl_add_u32 v{VT4}, v{VT3}, 4, v{VT4}")
    e(f"v_add_u32 v{VT4}, {L_QL}, v{VT4}")
    e(f"ds_read_b128 v[{QB}:{QB+3}], v{VT4}")
    e(f"ds_read_b128 v[{QB+4}:{QB+7}], v{VT4} offset:256")
    srd(8, 28, 64*256, WS_CNT)
    e(f"s_lshl_b32 s{S_CO}, s{S_PAIR}, 8")
    loads_K()
    e(f"v_mov_b32 v{VAT}, 1")
    e("s_mov_b64 exec, 1")
    e(f"buffer_atomic_add v{VAT}, v{VZ}, s[8:11], s{S_CO} offen sc0")
    e("s_mov_b64 exec, -1")
    loads_V()
    e(f"s_cmp_lt_u32 s{S_WAVE}, 4")
    e("s_cbranch_scc1 L_NODMA")
    srd(40, 12, 4096*448*2)
    e(f"v_mul_u32_u24 v{VT3}, 4682, v1")
    e(f"v_lshrrev_b32 v{VT3}, 16, v{VT3}")
    e(f"v_mul_u32_u24 v{VT2}, 672, v{VT3}")
    e(f"v_lshl_add_u32 v{VT2}, v1, 4, v{VT2}")
    e(f"s_sub_u32 s69, s{S_WAVE}, 4")
    e("s_mul_i32 s70, s69, 28672")
    e(f"s_lshl_b32 s71, s{S_HKV}, 2")
    e("s_add_u32 s71, s71, s69")
    e("s_mul_i32 s71, s71, 114688")
    e(f"s_mul_i32 s72, s{S_SPLIT}, 224")
    e("s_add_u32 s71, s71, s72")
    e("s_mov_b32 s72, 0")
    e("s_mov_b32 exec_hi, 0x00ffffff")
    lbl("L_WODMA")
    e("s_mov_b32 m0, s70")
    e("s_add_u32 s70, s70, 896")
    e(f"buffer_load_dwordx4 v{VT2}, s[40:43], s71 offen lds")
    e("s_add_u32 s71, s71, 3584")
    e("s_add_u32 s72, s72, 1")
    e("s_cmp_lt_u32 s72, 32")
    e("s_cbranch_scc1 L_WODMA")
    e("s_mov_b64 exec, -1")
    lbl("L_NODMA")
    for r in range(64):
        e(f"v_mov_b32 v{OB+r}, 0")
    e(f"v_mov_b32 v{VM}, 0xff7fffff")
    e(f"v_mov_b32 v{VL}, 0")
    e(f"v_mov_b32 v{VMC}, 0")
    e(f"v_cmp_gt_u32 vcc, 8, v{VT1}")
    e("s_waitcnt lgkmcnt(0)")
    e("s_nop 0")
    for r in range(8):
        e(f"v_cndmask_b32 v{QB+r}, 0, v{QB+r}, vcc")
    e(f"s_mov_b32 s{S_CNT}, 0")
    srd(40, 16, 3584)
    srd(44, 18, 3584)
    srd(48, 20, 3584)
    srd(52, 22, 2)
    srd(56, 4, 8*448*2)
    lbl("L_LOOP")
    e("s_waitcnt vmcnt(17)")
    for jj in range(2):
        for i in range(8):
            d = TB + i*4
            kk = KB + (i*2+jj)*4
            c = "0" if jj == 0 else f"v[{d}:{d+3}]"
            e(f"v_mfma_f32_16x16x32_bf16 v[{d}:{d+3}], v[{kk}:{kk+3}], v[{QB+jj*4}:{QB+jj*4+3}], {c}")
    e("s_waitcnt vmcnt(16)")
    e(f"v_readfirstlane_b32 s69, v{VAT}")
    e("s_cmp_ge_u32 s69, 256")
    e("s_cbranch_scc1 L_LASTK")
    e("s_lshl_b32 s69, s69, 14")
    e(f"s_add_u32 s{S_BASE}, s{S_PB}, s69")
    loads_K()
    e(f"v_mov_b32 v{VAT}, 1")
    e("s_mov_b64 exec, 1")
    e(f"buffer_atomic_add v{VAT}, v{VZ}, s[8:11], s{S_CO} offen sc0")
    e("s_mov_b64 exec, -1")
    e("s_branch L_AFTK")
    lbl("L_LASTK")
    e(f"s_mov_b32 s{S_CNT}, 1")
    e(f"v_mul_u32_u24 v{VT1}, 56, v1")
    for base, sr in [(32, 40), (46, 44), (60, 48)]:
        for i in range(7):
            e(f"buffer_load_dwordx2 v[{base+2*i}:{base+2*i+1}], v{VT1}, s[{sr}:{sr+3}], 0 offen offset:{i*8}")
    e(f"v_lshlrev_b32 v{VT1}, 1, v0")
    e(f"s_mul_i32 s69, s{S_B}, 896")
    e(f"buffer_load_ushort v74, v{VT1}, s[56:59], s69 offen")
    e(f"v_mov_b32 v{VT1}, 0")
    e(f"buffer_load_ushort v75, v{VT1}, s[52:55], 0 offen")
    lbl("L_AFTK")
    for i in range(8):
        d = TB + i*4
        e(f"v_mov_b32_dpp v{SB+i}, v{d} quad_perm:[0,0,0,0] {DPPM}")
        e(f"v_add_f32_dpp v{SB+i}, v{d+1}, v{SB+i} quad_perm:[1,1,1,1] {DPPM}")
        e(f"v_add_f32_dpp v{SB+i}, v{d+2}, v{SB+i} quad_perm:[2,2,2,2] {DPPM}")
        e(f"v_add_f32_dpp v{SB+i}, v{d+3}, v{SB+i} quad_perm:[3,3,3,3] {DPPM}")
    for i in range(0, 8, 2):
        e(f"v_cvt_pk_bf16_f32 v{VT1}, v{SB+i}, v{SB+i+1}")
        e(f"v_lshlrev_b32 v{SB+i}, 16, v{VT1}")
        e(f"v_and_b32 v{SB+i+1}, 0xffff0000, v{VT1}")
    e(f"v_max3_f32 v{VT1}, v{SB}, v{SB+1}, v{SB+2}")
    e(f"v_max3_f32 v{VT1}, v{VT1}, v{SB+3}, v{SB+4}")
    e(f"v_max3_f32 v{VT1}, v{VT1}, v{SB+5}, v{SB+6}")
    e(f"v_max_f32 v{VT1}, v{VT1}, v{SB+7}")
    e(f"v_cmp_gt_f32 vcc, v{VT1}, v{VM}")
    e("s_cbranch_vccz L_FAST")
    for sw in ["v_permlane16_swap_b32", "v_permlane32_swap_b32"]:
        e(f"v_mov_b32 v{VT2}, v{VT1}")
        e(f"v_mov_b32 v{VT3}, v{VT1}")
        e("s_nop 1")
        e(f"{sw} v{VT2}, v{VT3}")
        e("s_nop 1")
        e(f"v_max_f32 v{VT1}, v{VT2}, v{VT3}")
    e(f"v_max_f32 v{VT1}, v{VT1}, v{VM}")
    e(f"v_sub_f32 v{VT2}, v{VM}, v{VT1}")
    e(f"v_mul_f32 v{VT2}, s{S_C}, v{VT2}")
    e(f"v_exp_f32 v{VT2}, v{VT2}")
    e(f"v_mov_b32 v{VM}, v{VT1}")
    e(f"v_mul_f32 v{VMC}, s{S_C}, v{VT1}")
    e(f"v_mul_f32 v{VL}, v{VL}, v{VT2}")
    e(f"ds_bpermute_b32 v{VT3}, v{VBP}, v{VT2}")
    e("s_waitcnt lgkmcnt(0)")
    for r in range(64):
        e(f"v_mul_f32 v{OB+r}, v{OB+r}, v{VT3}")
    lbl("L_FAST")
    for i in range(8):
        e(f"v_fma_f32 v{SB+i}, v{SB+i}, s{S_C}, -v{VMC}")
    for i in range(8):
        e(f"v_exp_f32 v{SB+i}, v{SB+i}")
    e("s_nop 0")
    for i in range(0, 8, 2):
        e(f"v_cvt_pk_bf16_f32 v{PB+i//2}, v{SB+i}, v{SB+i+1}")
    e(f"v_add_f32 v{VT1}, v{SB}, v{SB+1}")
    e(f"v_add_f32 v{VT2}, v{SB+2}, v{SB+3}")
    e(f"v_add_f32 v{VT3}, v{SB+4}, v{SB+5}")
    e(f"v_add_f32 v{VT1}, v{VT1}, v{VT2}")
    e(f"v_add_f32 v{VT2}, v{SB+6}, v{SB+7}")
    e(f"v_add_f32 v{VT3}, v{VT3}, v{VT2}")
    e(f"v_add_f32 v{VT1}, v{VT1}, v{VT3}")
    e(f"v_add_f32 v{VL}, v{VL}, v{VT1}")
    e(f"s_cmp_eq_u32 s{S_CNT}, 1")
    e("s_cbranch_scc0 L_W16")
    e("s_waitcnt vmcnt(0)")
    lbl("L_W16")
    e("s_waitcnt vmcnt(17)")
    for h in range(2):
        for w in range(4):
            for p in range(4):
                a = VB + (h*8+2*p)*4 + w
                b = VB + (h*8+2*p+1)*4 + w
                e(f"v_perm_b32 v{TB+(2*w)*4+p}, v{b}, v{a}, s{S_SLO}")
                e(f"v_perm_b32 v{TB+(2*w+1)*4+p}, v{b}, v{a}, s{S_SHI}")
        if h == 1:
            e(f"s_cmp_eq_u32 s{S_CNT}, 1")
            e("s_cbranch_scc1 L_SKIPV")
            loads_V()
            lbl("L_SKIPV")
        e("s_nop 1")
        for j in range(8):
            o = OB + (h*8+j)*4
            e(f"v_mfma_f32_16x16x32_bf16 v[{o}:{o+3}], v[{PB}:{PB+3}], v[{TB+j*4}:{TB+j*4+3}], v[{o}:{o+3}]")
    e(f"s_cmp_eq_u32 s{S_CNT}, 0")
    e("s_cbranch_scc1 L_LOOP")
    stamp()
    if STAMP:
        e("s_waitcnt lgkmcnt(0)")
        srd(56, 28, 65536, 0x210000)
        e("s_lshl_b32 s69, s2, 3")
        e(f"s_add_u32 s69, s69, s{S_WAVE}")
        e("s_lshl_b32 s69, s69, 2")
        e(f"v_mov_b32 v{VT1}, s{80+2*(nstamp[0]-1)}")
        e(f"v_mov_b32 v{VT2}, 0")
        e(f"buffer_store_dword v{VT1}, v{VT2}, s[56:59], s69 offen")
    for sw in ["v_permlane16_swap_b32", "v_permlane32_swap_b32"]:
        e(f"v_mov_b32 v{VT2}, v{VL}")
        e(f"v_mov_b32 v{VT3}, v{VL}")
        e("s_nop 1")
        e(f"{sw} v{VT2}, v{VT3}")
        e("s_nop 1")
        e(f"v_add_f32 v{VL}, v{VT2}, v{VT3}")
    e(f"v_and_b32 v{VT1}, 15, v1")
    e(f"v_lshrrev_b32 v{VT2}, 4, v1")
    e(f"v_lshlrev_b32 v{VT3}, 10, v{VT2}")
    e(f"v_lshl_add_u32 v{VT3}, v{VT1}, 5, v{VT3}")
    e(f"s_lshl_b32 s69, s{S_WAVE}, 11")
    e(f"s_add_u32 s69, s69, {L_CMB}")
    e(f"v_add_u32 v{VT3}, s69, v{VT3}")
    e("v_cmp_gt_u32 vcc, 32, v1")
    e("s_and_saveexec_b64 s[72:73], vcc")
    for h in range(2):
        for j in range(8):
            e(f"ds_write_b32 v{VT3}, v{OB+(h*8+j)*4} offset:{(h*128+j)*4}")
    e("s_mov_b64 exec, s[72:73]")
    e(f"v_lshlrev_b32 v{VT3}, 1, v1")
    e(f"s_lshl_b32 s69, s{S_WAVE}, 4")
    e(f"s_add_u32 s69, s69, {L_ML}")
    e(f"v_add_u32 v{VT3}, s69, v{VT3}")
    e(f"v_and_b32 v{VT1}, 0xfb, v1")
    e(f"v_cmp_eq_u32 vcc, 0, v{VT1}")
    e("s_and_saveexec_b64 s[72:73], vcc")
    e(f"ds_write_b64 v{VT3}, v[{VM}:{VM+1}]")
    e("s_mov_b64 exec, s[72:73]")
    srd(40, 28, 256*PG_STRIDE, WS_PG)
    srd(52, 28, 64*3584, WS_OG)
    e("v_lshrrev_b32 v2, 8, v0")
    e("v_lshlrev_b32 v3, 3, v2")
    e(f"v_add_u32 v3, {L_ML}, v3")
    e("v_lshlrev_b32 v4, 2, v0")
    e(f"v_add_u32 v5, {L_CMB}, v4")
    e("v_and_b32 v9, 0xfffffffe, v0")
    e("v_lshlrev_b32 v9, 3, v9")
    e(f"v_mov_b32 v14, s{S_N}")
    e(f"v_mov_b32 v15, s{S_N+1}")
    e(f"v_mov_b32 v18, s{S_N}")
    e(f"v_mov_b32 v19, s{S_N+1}")
    e("s_waitcnt lgkmcnt(0)")
    e("s_barrier")
    for w in range(8):
        e(f"ds_read_b64 v[{96+2*w}:{97+2*w}], v3 offset:{w*16}")
    for w in range(8):
        e(f"ds_read_b32 v{112+w}, v5 offset:{w*2048}")
    e(f"s_lshl_b32 s69, s{S_PAIR}, 2")
    e(f"s_add_u32 s69, s69, s{S_SPLIT}")
    e(f"s_mul_i32 s69, s69, {PG_STRIDE}")
    e("v_lshlrev_b32 v8, 4, v2")
    e("v_add_u32 v8, 4096, v8")
    e("s_waitcnt lgkmcnt(0)")
    e("v_max3_f32 v16, v96, v98, v100")
    e("v_max3_f32 v16, v16, v102, v104")
    e("v_max3_f32 v16, v16, v106, v108")
    e("v_max_f32 v16, v16, v110")
    for w in range(8):
        e(f"v_sub_f32 v{96+2*w}, v{96+2*w}, v16")
        e(f"v_mul_f32 v{96+2*w}, s{S_C}, v{96+2*w}")
        e(f"v_exp_f32 v{96+2*w}, v{96+2*w}")
    e("s_nop 0")
    e("v_mul_f32 v17, v96, v97")
    e("v_mul_f32 v12, v96, v112")
    for w in range(1, 8):
        e(f"v_fmac_f32 v17, v{96+2*w}, v{97+2*w}")
        e(f"v_fmac_f32 v12, v{96+2*w}, v{112+w}")
    e("s_nop 1")
    e(f"v_mov_b32_dpp v13, v12 quad_perm:[1,0,3,2] {DPPM}")
    e("s_mov_b32 exec_lo, 0x55555555")
    e("s_mov_b32 exec_hi, 0x55555555")
    e("buffer_store_dwordx4 v[12:15], v9, s[40:43], s69 offen sc1")
    e("s_mov_b64 exec, -1")
    e("v_and_b32 v6, 255, v0")
    e("v_cmp_eq_u32 vcc, 0, v6")
    e("s_and_saveexec_b64 s[72:73], vcc")
    e("buffer_store_dwordx4 v[16:19], v8, s[40:43], s69 offen sc1")
    e("s_mov_b64 exec, s[72:73]")
    e("v_mul_u32_u24 v12, 4682, v0")
    e("v_lshrrev_b32 v12, 16, v12")
    e("v_mul_u32_u24 v13, 14, v12")
    e("v_sub_u32 v13, v0, v13")
    e("v_mul_u32_u24 v20, 3584, v12")
    e("v_lshl_add_u32 v20, v13, 4, v20")
    e("v_lshlrev_b32 v21, 7, v12")
    e(f"v_add_u32 v21, {L_OL}, v21")
    e("v_mul_u32_u24 v22, 448, v12")
    e("v_lshl_add_u32 v22, v13, 5, v22")
    e(f"v_add_u32 v22, {L_CMB}, v22")
    e("v_lshlrev_b32 v6, 3, v0")
    e(f"v_add_u32 v6, {L_OL}, v6")
    e(f"s_mul_i32 s69, s{S_PAIR}, {4*PG_STRIDE}")
    e(f"s_cmp_lg_u32 s{S_WAVE}, 0")
    e("s_cbranch_scc1 L_H1_DONE")
    e("v_lshrrev_b32 v10, 1, v1")
    e(f"v_mul_u32_u24 v10, {PG_STRIDE}, v10")
    e("v_and_b32 v11, 1, v1")
    e("v_lshl_add_u32 v10, v11, 4, v10")
    e("v_add_u32 v10, 4096, v10")
    e("v_lshlrev_b32 v11, 3, v1")
    e(f"v_add_u32 v11, {L_ML2}, v11")
    e("s_mov_b64 exec, 0xff")
    poll("L_H1", lambda: e("buffer_load_dwordx4 v[96:99], v10, s[40:43], s69 offen sc1"), [96], sleep=6)
    e("ds_write_b64 v11, v[96:97]")
    e("s_mov_b64 exec, -1")
    e("s_waitcnt lgkmcnt(0)")
    lbl("L_H1_DONE")
    e("s_barrier")
    stamp()
    e("v_lshlrev_b32 v3, 3, v2")
    e(f"v_add_u32 v3, {L_ML2}, v3")
    for s in range(4):
        e(f"ds_read_b64 v[{112+2*s}:{113+2*s}], v3 offset:{s*16}")
    def iss2():
        e("s_mov_b32 s70, s69")
        for s in range(4):
            e(f"buffer_load_dwordx4 v[{96+4*s}:{99+4*s}], v9, s[40:43], s70 offen sc1")
            e(f"s_add_u32 s70, s70, {PG_STRIDE}")
    poll("L_T2", iss2, [96, 100, 104, 108], sleep=1)
    e("v_and_b32 v7, 1, v0")
    e("v_cmp_eq_u32 vcc, 1, v7")
    e("s_waitcnt lgkmcnt(0)")
    e("s_nop 0")
    for s in range(4):
        e(f"v_cndmask_b32 v{96+4*s}, v{96+4*s}, v{97+4*s}, vcc")
    e("v_max3_f32 v10, v112, v114, v116")
    e("v_max_f32 v10, v10, v118")
    for s in range(4):
        e(f"v_sub_f32 v{112+2*s}, v{112+2*s}, v10")
        e(f"v_mul_f32 v{112+2*s}, s{S_C}, v{112+2*s}")
        e(f"v_exp_f32 v{112+2*s}, v{112+2*s}")
    e("s_nop 0")
    e("v_mul_f32 v11, v112, v113")
    e("v_mul_f32 v7, v112, v96")
    for s in range(1, 4):
        e(f"v_fmac_f32 v11, v{112+2*s}, v{113+2*s}")
        e(f"v_fmac_f32 v7, v{112+2*s}, v{96+4*s}")
    e("v_rcp_f32 v10, v11")
    e("s_nop 0")
    e("v_mul_f32 v8, v7, v10")
    e("v_fma_f32 v7, -v8, v11, v7")
    e("v_fma_f32 v8, v7, v10, v8")
    e("v_cvt_pk_bf16_f32 v8, v8, v8")
    e("v_lshlrev_b32 v11, 16, v8")
    e("v_and_b32 v10, 0xffff, v8")
    e("ds_write_b64 v6, v[10:11]")
    e("s_waitcnt lgkmcnt(0)")
    e("s_barrier")
    e(f"s_cmp_eq_u32 s{S_WAVE}, 7")
    e("s_cbranch_scc1 L_T3SKIP")
    for i in range(16):
        e(f"ds_read_b128 v[{96+4*i}:{99+4*i}], v20 offset:{i*224}")
    for i in range(8):
        e(f"ds_read_b128 v[{160+4*i}:{163+4*i}], v21 offset:{i*16}")
    for j in range(8):
        e(f"v_mov_b32 v{192+j}, 0")
    e("s_waitcnt lgkmcnt(0)")
    for i in range(16):
        lo, hi = 160 + 2*i, 161 + 2*i
        for w in range(4):
            e(f"v_dot2_f32_bf16 v{192+2*w}, v{96+4*i+w}, v{lo}, v{192+2*w}")
            e(f"v_dot2_f32_bf16 v{193+2*w}, v{96+4*i+w}, v{hi}, v{193+2*w}")
    e("s_nop 2")
    e("ds_write_b128 v22, v[192:195]")
    e("ds_write_b128 v22, v[196:199] offset:16")
    lbl("L_T3SKIP")
    e("s_waitcnt lgkmcnt(0)")
    e("s_barrier")
    e(f"s_mul_i32 s69, s{S_B}, {8*3584}")
    e(f"s_cmp_ge_u32 s{S_WAVE}, 2")
    e("s_cbranch_scc1 L_T3B")
    for ks in range(32):
        e(f"ds_read_b32 v{96+ks}, v5 offset:{ks*448}")
    e(f"s_mul_i32 s70, s{S_HKV}, 3584")
    e(f"s_mul_i32 s71, s{S_SPLIT}, 896")
    e("s_add_u32 s70, s70, s71")
    e("s_add_u32 s70, s70, s69")
    e("v_cmp_gt_u32 vcc, 112, v0")
    e("s_and_b32 vcc_lo, vcc_lo, 0x55555555")
    e("s_and_b32 vcc_hi, vcc_hi, 0x55555555")
    e("s_waitcnt lgkmcnt(0)")
    for st in [16, 8, 4, 2]:
        for i in range(st):
            e(f"v_add_f32 v{96+i}, v{96+i}, v{96+st+i}")
    e("v_add_f32 v12, v96, v97")
    e("s_nop 1")
    e(f"v_mov_b32_dpp v13, v12 quad_perm:[1,0,3,2] {DPPM}")
    e("s_and_saveexec_b64 s[72:73], vcc")
    e("buffer_store_dwordx4 v[12:15], v9, s[52:55], s70 offen sc1")
    e("s_mov_b64 exec, s[72:73]")
    lbl("L_T3B")
    e(f"s_cmp_lg_u32 s{S_WAVE}, 0")
    e("s_cbranch_scc1 L_H2_DONE")
    e("v_mul_u32_u24 v10, 896, v1")
    e("v_add_u32 v10, 880, v10")
    e("s_mov_b32 exec_hi, 0")
    poll("L_H2", lambda: e("buffer_load_dwordx4 v[96:99], v10, s[52:55], s69 offen sc1"), [96], sleep=6)
    e("s_mov_b64 exec, -1")
    lbl("L_H2_DONE")
    e("s_barrier")
    stamp()
    e(f"s_cmp_eq_u32 s{S_WAVE}, 7")
    e("s_cbranch_scc1 L_T4SKIP")
    for (src, dst) in [(32, 128), (46, 156), (60, 184)]:
        for i in range(14):
            e(f"v_lshlrev_b32 v{dst+2*i}, 16, v{src+i}")
            e(f"v_and_b32 v{dst+2*i+1}, 0xffff0000, v{src+i}")
    def iss4():
        e("s_mov_b32 s70, s69")
        for p in range(8):
            e(f"buffer_load_dwordx4 v[{96+4*p}:{99+4*p}], v9, s[52:55], s70 offen sc1")
            e("s_add_u32 s70, s70, 3584")
    poll("L_T4", iss4, [96+4*p for p in range(8)], sleep=1)
    e("v_and_b32 v7, 1, v0")
    e("v_cmp_eq_u32 vcc, 1, v7")
    e(f"v_add_u32 v5, {L_H}, v4")
    e("s_nop 0")
    for p in range(8):
        e(f"v_cndmask_b32 v{96+4*p}, v{96+4*p}, v{97+4*p}, vcc")
    e("v_add_f32 v96, v96, v100")
    e("v_add_f32 v104, v104, v108")
    e("v_add_f32 v112, v112, v116")
    e("v_add_f32 v120, v120, v124")
    e("v_add_f32 v96, v96, v104")
    e("v_add_f32 v112, v112, v120")
    e("v_add_f32 v96, v96, v112")
    round_bf16(96, 97)
    e("v_lshlrev_b32 v74, 16, v74")
    e("v_add_f32 v96, v96, v74")
    round_bf16(96, 97)
    e("ds_write_b32 v5, v96")
    e("s_waitcnt lgkmcnt(0)")
    lbl("L_T4SKIP")
    e("s_barrier")
    e(f"s_cmp_eq_u32 s{S_WAVE}, 7")
    e("s_cbranch_scc1 L_END")
    e("v_lshlrev_b32 v6, 2, v1")
    e(f"v_add_u32 v6, {L_H}, v6")
    xs = list(range(10, 17))
    for i in range(7):
        e(f"ds_read_b32 v{xs[i]}, v6 offset:{i*256}")
    e(f"s_lshl_b32 s69, s{S_SPLIT}, 3")
    e(f"s_add_u32 s69, s69, s{S_HKV}")
    e("s_mul_i32 s69, s69, 14")
    e(f"s_lshl_b32 s70, s{S_WAVE}, 1")
    e("s_add_u32 s69, s69, s70")
    e("s_lshl_b32 s70, s69, 2")
    e(f"s_add_u32 s70, s70, {L_H}")
    e("v_mov_b32 v7, s70")
    e("ds_read_b64 v[34:35], v7")
    e("s_waitcnt lgkmcnt(0)")
    layernorm_wave(xs, 448, 2)
    layernorm_wave(xs, 448, 2)
    e("s_and_b32 s70, s69, 63")
    e("s_lshr_b32 s71, s69, 6")
    e("s_add_u32 s74, s69, 1")
    e("s_and_b32 s75, s74, 63")
    e("s_lshr_b32 s76, s74, 6")
    e("v_mov_b32 v36, v10")
    e("v_mov_b32 v37, v10")
    for i in range(1, 7):
        e(f"s_cmp_eq_u32 s71, {i}")
        e("s_cselect_b64 s[72:73], -1, 0")
        e(f"v_cndmask_b32 v36, v36, v{10+i}, s[72:73]")
        e(f"s_cmp_eq_u32 s76, {i}")
        e("s_cselect_b64 s[72:73], -1, 0")
        e(f"v_cndmask_b32 v37, v37, v{10+i}, s[72:73]")
    e("s_nop 1")
    e("v_readlane_b32 s40, v36, s70")
    e("v_readlane_b32 s41, v37, s75")
    k1 = -2.0*0.7978845608028654*1.4426950408889634
    k2 = k1*0.044715
    e(f"s_mov_b32 s42, {hexf(k1)}")
    e(f"s_mov_b32 s43, {hexf(k2)}")
    e("v_mov_b32 v40, 0")
    e("v_mov_b32 v41, 0")
    e("v_mov_b32 v42, s42")
    stamp()
    for i in range(28):
        for o in range(2):
            u, a = 44+o*4, 45+o*4
            e(f"v_fma_f32 v{u}, s{40+o}, v{128+i}, v{156+i}")
            e(f"v_mul_f32 v{a}, v{u}, v{u}")
            e(f"v_fma_f32 v{a}, s43, v{a}, v42")
            e(f"v_mul_f32 v{a}, v{a}, v{u}")
        for o in range(2):
            e(f"v_exp_f32 v{45+o*4}, v{45+o*4}")
        for o in range(2):
            e(f"v_add_f32 v{45+o*4}, 1.0, v{45+o*4}")
        for o in range(2):
            e(f"v_rcp_f32 v{45+o*4}, v{45+o*4}")
        for o in range(2):
            e(f"v_mul_f32 v{44+o*4}, v{44+o*4}, v{184+i}")
        for o in range(2):
            e(f"v_fmac_f32 v{40+o}, v{44+o*4}, v{45+o*4}")
    wave_allreduce(40, 44, 45)
    wave_allreduce(41, 44, 45)
    e("v_lshlrev_b32 v75, 16, v75")
    for o in range(2):
        round_bf16(40+o, 44)
        e(f"v_add_f32 v{40+o}, v{40+o}, v75")
        round_bf16(40+o, 44)
        e(f"v_add_f32 v{40+o}, v{40+o}, v{34+o}")
    e("v_cvt_pk_bf16_f32 v40, v40, v41")
    srd(56, 24, 8*448*2)
    e(f"s_mul_i32 s70, s{S_B}, 448")
    e("s_add_u32 s70, s70, s69")
    e("s_lshl_b32 s70, s70, 1")
    e("v_mov_b32 v7, 0")
    e("v_cmp_eq_u32 vcc, 0, v1")
    e("s_and_saveexec_b64 s[72:73], vcc")
    e("buffer_store_dword v40, v7, s[56:59], s70 offen")
    if STAMP:
        stamp()
        e("s_waitcnt lgkmcnt(0) vmcnt(0)")
        e(f"s_cmp_lg_u32 s{S_WAVE}, 0")
        e("s_cbranch_scc1 L_END")
        srd(56, 28, 65536, 0x200000)
        e("s_lshl_b32 s69, s2, 6")
        for i in range(nstamp[0]):
            e(f"s_sub_u32 s70, s{80+2*i}, s80")
            e("v_mov_b32 v2, s70")
            e(f"buffer_store_dword v2, v7, s[56:59], s69 offen offset:{i*4}")
        e("v_mov_b32 v2, s80")
        e(f"buffer_store_dword v2, v7, s[56:59], s69 offen offset:60")
    lbl("L_END")
    e("s_endpgm")
    e('.section .rodata,"a"')
    e(".p2align 6")
    e(f".amdhsa_kernel {k}")
    e("  .amdhsa_next_free_vgpr 256")
    e("  .amdhsa_next_free_sgpr 102")
    e("  .amdhsa_accum_offset 256")
    e("  .amdhsa_group_segment_fixed_size 0")
    e("  .amdhsa_kernarg_size 104")
    e("  .amdhsa_user_sgpr_count 2")
    e("  .amdhsa_user_sgpr_kernarg_segment_ptr 1")
    e("  .amdhsa_system_sgpr_workgroup_id_x 1")
    e(".end_amdhsa_kernel")

hdr = open(f"cdna_kernels/{NAME}.s.ref").read().split("\n")
for h in hdr:
    if h.startswith(";") and "@launch" not in h and "Override launch" not in h and "grid=ceil" not in h:
        e(h)
e(f"; @launch grid=(256,1,1) block=(512,1,1) lds={L_END}")
e('.amdgcn_target "amdgcn-amd-amdhsa--gfx950"')
gen()
open(OUT, "w").write("\n".join(L) + "\n")
print("wrote", OUT, len(L), "lines; lds", L_END)
```

```python
import sys, struct
NAME = "sequential_preLN__gqa_block_cached__mixer_token_mlp__decode"
OUT = sys.argv[1] if len(sys.argv) > 1 else f"cdna_kernels/{NAME}.s"
STAMP = len(sys.argv) > 2 and sys.argv[2] == "stamp"

WS_QG = 0x0
WS_PG = 0x20000
PG_STRIDE = 258*16
WS_OG = 0x130000
WS_CNT = 0x170000
L_WOQ = 0
L_XN  = 114688
L_QL  = L_XN + 7168
L_CMB = L_QL + 1024
L_ML  = L_CMB + 16384
L_OL  = L_ML + 128
L_H   = L_OL + 4096
L_NON = L_H + 1792
L_ML2 = L_NON + 16
L_END = L_ML2 + 64

L = []
def e(s=""): L.append(s)
def lbl(s): L.append(s + ":")
C_SCALE = 0.0625 * 1.4426950408889634
def f2u(x): return struct.unpack("<I", struct.pack("<f", x))[0]
def hexf(x): return "0x%08x" % f2u(x)
DPPM = "row_mask:0xf bank_mask:0xf"
nstamp = [0]
def stamp():
    if STAMP:
        n = nstamp[0]; nstamp[0] += 1
        e(f"s_memrealtime s[{80+2*n}:{81+2*n}]")

def wave_allreduce(v, t1, t2, op="add"):
    ins = {"add": "v_add_f32", "max": "v_max_f32"}[op]
    for mod in ["quad_perm:[1,0,3,2]", "quad_perm:[2,3,0,1]", "row_half_mirror", "row_mirror"]:
        e("s_nop 1")
        e(f"{ins}_dpp v{v}, v{v}, v{v} {mod} {DPPM}")
    for sw in ["v_permlane16_swap_b32", "v_permlane32_swap_b32"]:
        e(f"v_mov_b32 v{t1}, v{v}")
        e(f"v_mov_b32 v{t2}, v{v}")
        e("s_nop 1")
        e(f"{sw} v{t1}, v{t2}")
        e("s_nop 1")
        e(f"{ins} v{v}, v{t1}, v{t2}")

def srd(d, b, nbytes, off=0):
    if off:
        e(f"s_add_u32 s{d}, s{b}, {off}")
        e(f"s_addc_u32 s{d+1}, s{b+1}, 0")
        e(f"s_and_b32 s{d+1}, s{d+1}, 0xffff")
    else:
        e(f"s_mov_b32 s{d}, s{b}")
        e(f"s_and_b32 s{d+1}, s{b+1}, 0xffff")
    e(f"s_mov_b32 s{d+2}, {nbytes}")
    e(f"s_mov_b32 s{d+3}, 0x00020000")

def round_bf16(v, t):
    e(f"v_cvt_pk_bf16_f32 v{t}, v{v}, v{v}")
    e(f"v_lshlrev_b32 v{v}, 16, v{t}")

def layernorm_wave(xs, n, t, eps=1e-5):
    s, a, b, m, c, d = t, t+1, t+2, t+3, t+4, t+5
    e(f"v_mov_b32 v{s}, v{xs[0]}")
    for x in xs[1:]:
        e(f"v_add_f32 v{s}, v{s}, v{x}")
    wave_allreduce(s, a, b)
    e(f"v_mul_f32 v{m}, {hexf(1.0/n)}, v{s}")
    e(f"v_sub_f32 v{c}, v{xs[0]}, v{m}")
    e(f"v_mul_f32 v{s}, v{c}, v{c}")
    for x in xs[1:]:
        e(f"v_sub_f32 v{c}, v{x}, v{m}")
        e(f"v_fmac_f32 v{s}, v{c}, v{c}")
    wave_allreduce(s, a, b)
    e(f"v_mul_f32 v{s}, {hexf(1.0/n)}, v{s}")
    round_bf16(m, a)
    round_bf16(s, a)
    e(f"v_add_f32 v{s}, {hexf(eps)}, v{s}")
    round_bf16(s, a)
    e(f"v_sqrt_f32 v{s}, v{s}")
    e("s_nop 0")
    round_bf16(s, a)
    e(f"v_rcp_f32 v{d}, v{s}")
    e("s_nop 0")
    for x in xs:
        e(f"v_sub_f32 v{x}, v{x}, v{m}")
        round_bf16(x, a)
        e(f"v_mul_f32 v{c}, v{x}, v{d}")
        e(f"v_fma_f32 v{a}, -v{c}, v{s}, v{x}")
        e(f"v_fma_f32 v{x}, v{a}, v{d}, v{c}")
        round_bf16(x, a)

KB, VB, TB, OB = 32, 96, 160, 192
QB, SB, PB = 2, 10, 18
VM, VL, VMC, VKO, VVO, VT1, VT2, VT3, VBP, VT4 = 22, 23, 24, 25, 26, 27, 28, 29, 30, 31
import os
KNT = os.environ.get("KNT"," nt")
VNT = os.environ.get("VNT"," nt")
S_WAVE, S_HKV, S_B, S_SPLIT, S_PAIR, S_BASE, S_CNT, S_SLO, S_SHI, S_C = 3, 60, 61, 62, 63, 64, 65, 66, 67, 68
S_N = 78
S_PB = 15
VAT, VZ = 31, 1+0
S_CO = 14

def loads_K():
    for i in range(8):
        for jj in range(2):
            r = KB + (i*2+jj)*4
            e(f"buffer_load_dwordx4 v[{r}:{r+3}], v{VKO}, s[32:35], s{S_BASE} offen offset:{i*512+jj*256}{KNT}")
def loads_V():
    for h in range(2):
        for i in range(8):
            r = VB + (h*8+i)*4
            e(f"buffer_load_dwordx4 v[{r}:{r+3}], v{VVO}, s[36:39], s{S_BASE} offen offset:{i*512+h*256}{VNT}")

def poll(tag, issue, gregs, sleep=4):
    lbl(f"{tag}_RETRY")
    issue()
    e("s_waitcnt vmcnt(0)")
    e("s_mov_b64 s[72:73], exec")
    for g in gregs:
        e(f"v_cmp_eq_u64 vcc, s[{S_N}:{S_N+1}], v[{g+2}:{g+3}]")
        e("s_and_b64 s[72:73], s[72:73], vcc")
    e("s_cmp_eq_u64 s[72:73], exec")
    e(f"s_cbranch_scc1 {tag}_OK")
    e(f"s_sleep {sleep}")
    e(f"s_branch {tag}_RETRY")
    lbl(f"{tag}_OK")

def gen():
    k = f"{NAME}_kernel"
    e(".text"); e(f".globl {k}"); e(".p2align 8"); e(f".type {k},@function"); lbl(k)
    stamp()
    e("s_cmp_ge_u32 s2, 256")
    e("s_cbranch_scc1 L_END")
    e("s_load_dwordx8 s[4:11], s[0:1], 0")
    e("s_load_dwordx2 s[12:13], s[0:1], 32")
    e("s_load_dwordx8 s[16:23], s[0:1], 48")
    e("s_load_dwordx4 s[24:27], s[0:1], 80")
    e("s_load_dwordx2 s[28:29], s[0:1], 96")
    e("s_memrealtime s[74:75]")
    e(f"v_lshrrev_b32 v{VT4}, 6, v0")
    e("v_and_b32 v1, 63, v0")
    e(f"v_readfirstlane_b32 s{S_WAVE}, v{VT4}")
    e(f"s_lshr_b32 s{S_PAIR}, s2, 2")
    e(f"s_and_b32 s{S_SPLIT}, s2, 3")
    e(f"s_and_b32 s{S_HKV}, s{S_PAIR}, 7")
    e(f"s_lshr_b32 s{S_B}, s{S_PAIR}, 3")
    e(f"s_mov_b32 s{S_SLO}, 0x05040100")
    e(f"s_mov_b32 s{S_SHI}, 0x07060302")
    e(f"s_mov_b32 s{S_C}, {hexf(C_SCALE)}")
    e(f"s_lshl_b32 s{S_PB}, s{S_PAIR}, 22")
    e(f"s_lshl_b32 s69, s{S_SPLIT}, 17")
    e(f"s_add_u32 s{S_BASE}, s{S_PB}, s69")
    e(f"s_lshl_b32 s69, s{S_WAVE}, 14")
    e(f"s_add_u32 s{S_BASE}, s{S_BASE}, s69")
    e(f"v_and_b32 v{VT1}, 15, v1")
    e(f"v_lshrrev_b32 v{VT2}, 4, v1")
    e(f"v_lshrrev_b32 v{VT3}, 2, v{VT1}")
    e(f"v_lshlrev_b32 v{VKO}, 12, v{VT3}")
    e(f"v_lshl_add_u32 v{VKO}, v{VT2}, 6, v{VKO}")
    e(f"v_and_b32 v{VT3}, 3, v{VT1}")
    e(f"v_lshl_add_u32 v{VKO}, v{VT3}, 4, v{VKO}")
    e(f"v_lshlrev_b32 v{VVO}, 12, v{VT2}")
    e(f"v_lshl_add_u32 v{VVO}, v{VT1}, 4, v{VVO}")
    e(f"v_lshlrev_b32 v{VBP}, 4, v{VT2}")
    e("s_waitcnt lgkmcnt(0)")
    srd(32, 6, 0x10000000)
    srd(36, 8, 0x10000000)
    srd(40, 4, 8*448*2)
    srd(44, 10, 448*4096*2)
    srd(48, 26, 256)
    e(f"s_mul_i32 s69, s{S_WAVE}, 896")
    e(f"v_lshlrev_b32 v{VT3}, 1, v1")
    xs = list(range(10, 17))
    for i in range(7):
        e(f"buffer_load_ushort v{xs[i]}, v{VT3}, s[40:43], s69 offen offset:{i*128}")
    e(f"s_lshl_b32 s70, s{S_SPLIT}, 3")
    e(f"s_add_u32 s77, s70, s{S_B}")
    e(f"s_cmp_eq_u32 s{S_WAVE}, 7")
    e("s_cbranch_scc1 L_NONCE")
    e(f"v_lshrrev_b32 v{VT4}, 3, v1")
    e(f"v_lshlrev_b32 v{VT4}, 16, v{VT4}")
    e(f"v_and_b32 v{VT3}, 7, v1")
    e(f"v_lshl_add_u32 v{VT4}, v{VT3}, 2, v{VT4}")
    e("s_lshl_b32 s70, s77, 5")
    e(f"s_lshl_b32 s71, s{S_HKV}, 10")
    e("s_add_u32 s70, s70, s71")
    e(f"s_lshl_b32 s71, s{S_WAVE}, 19")
    e("s_add_u32 s71, s71, s70")
    for i in range(8):
        e(f"buffer_load_dword v{160+i}, v{VT4}, s[44:47], s71 offen")
        e("s_add_u32 s71, s71, 8192")
    e("s_waitcnt vmcnt(8)")
    e("s_branch L_LN")
    lbl("L_NONCE")
    e("s_or_b32 s74, s74, 1")
    e("v_mov_b32 v160, s74")
    e("v_mov_b32 v161, s75")
    e("v_mov_b32 v162, 0")
    e("v_mov_b32 v163, 0")
    e("v_mov_b32 v164, 0")
    e("s_cmp_ge_u32 s2, 8")
    e("s_cbranch_scc1 L_NOCAS")
    e("s_mov_b64 exec, 1")
    e("buffer_atomic_cmpswap_x2 v[160:163], v164, s[48:51], 0 offen")
    e("s_mov_b64 exec, -1")
    e("s_waitcnt vmcnt(1)")
    e("s_branch L_LN")
    lbl("L_NOCAS")
    e("s_waitcnt vmcnt(0)")
    lbl("L_LN")
    stamp()
    for x in xs:
        e(f"v_lshlrev_b32 v{x}, 16, v{x}")
    layernorm_wave(xs, 448, 2)
    e(f"v_lshlrev_b32 v{VT3}, 1, v1")
    e(f"s_add_u32 s69, s69, {L_XN}")
    e(f"v_add_u32 v{VT3}, s69, v{VT3}")
    for i, x in enumerate(xs):
        e(f"v_lshrrev_b32 v{x}, 16, v{x}")
        e(f"ds_write_b16 v{VT3}, v{x} offset:{i*128}")
    e(f"v_and_b32 v{VT3}, 7, v1")
    e(f"v_mul_u32_u24 v{VT3}, 896, v{VT3}")
    e(f"v_lshrrev_b32 v{VT4}, 3, v1")
    e(f"v_lshl_add_u32 v{VT3}, v{VT4}, 4, v{VT3}")
    e(f"s_lshl_b32 s69, s{S_WAVE}, 7")
    e(f"s_add_u32 s69, s69, {L_XN}")
    e(f"v_add_u32 v{VT3}, s69, v{VT3}")
    e("s_waitcnt lgkmcnt(0)")
    e("s_barrier")
    e(f"s_cmp_eq_u32 s{S_WAVE}, 7")
    e("s_cbranch_scc1 L_NONCE2")
    e(f"ds_read_b128 v[2:5], v{VT3}")
    e("s_waitcnt vmcnt(0)")
    for p in range(4):
        e(f"v_perm_b32 v{168+p}, v{161+2*p}, v{160+2*p}, s{S_SLO}")
        e(f"v_perm_b32 v{172+p}, v{161+2*p}, v{160+2*p}, s{S_SHI}")
    e(f"v_lshrrev_b32 v{VT3}, 4, v1")
    e(f"v_lshlrev_b32 v{VT3}, 8, v{VT3}")
    e(f"v_and_b32 v{VT4}, 7, v1")
    e(f"v_lshl_add_u32 v{VT3}, v{VT4}, 3, v{VT3}")
    e(f"s_lshl_b32 s69, s{S_WAVE}, 10")
    e(f"s_add_u32 s69, s69, {L_CMB}")
    e(f"v_add_u32 v{VT3}, s69, v{VT3}")
    e(f"v_lshrrev_b32 v{VT4}, 5, v1")
    e(f"v_bfe_u32 v6, v1, 3, 1")
    e(f"v_cmp_eq_u32 vcc, v{VT4}, v6")
    e("s_waitcnt lgkmcnt(0)")
    e("v_mfma_f32_16x16x32_bf16 v[176:179], v[2:5], v[168:171], 0")
    e("v_mfma_f32_16x16x32_bf16 v[180:183], v[2:5], v[172:175], 0")
    e("s_and_saveexec_b64 s[72:73], vcc")
    e("s_nop 7")
    for r in range(4):
        e(f"v_mov_b32 v6, v{176+r}")
        e(f"v_mov_b32 v7, v{180+r}")
        e(f"ds_write_b64 v{VT3}, v[6:7] offset:{r*64}")
    e("s_mov_b64 exec, s[72:73]")
    e("s_branch L_QRED")
    lbl("L_NONCE2")
    e("buffer_load_dwordx2 v[2:3], v164, s[48:51], 0 offen sc1")
    e("s_waitcnt vmcnt(0)")
    e("v_readfirstlane_b32 s70, v2")
    e("v_readfirstlane_b32 s71, v3")
    e("s_cmp_eq_u64 s[70:71], 0")
    e("s_cbranch_scc1 L_NONCE2")
    e(f"v_mov_b32 v4, {L_NON}")
    e("ds_write_b64 v4, v[2:3]")
    lbl("L_QRED")
    e("s_waitcnt lgkmcnt(0)")
    e("s_barrier")
    stamp()
    e(f"v_mov_b32 v4, {L_NON}")
    e("ds_read_b64 v[2:3], v4")
    e("s_waitcnt lgkmcnt(0)")
    e(f"v_readfirstlane_b32 s{S_N}, v2")
    e(f"v_readfirstlane_b32 s{S_N+1}, v3")
    e(f"s_cmp_lg_u32 s{S_WAVE}, 0")
    e("s_cbranch_scc1 L_JOIN")
    e(f"v_lshlrev_b32 v{VT3}, 3, v1")
    e(f"v_add_u32 v{VT3}, {L_CMB}, v{VT3}")
    for i in range(14):
        e(f"ds_read_b64 v[{32+2*i}:{33+2*i}], v{VT3} offset:{i*512}")
    srd(40, 28, 64*128*16, WS_QG)
    e(f"v_lshrrev_b32 v{VT3}, 3, v1")
    e(f"v_lshlrev_b32 v{VT3}, 14, v{VT3}")
    e(f"v_and_b32 v{VT4}, 7, v1")
    e(f"v_lshl_add_u32 v{VT3}, v{VT4}, 3, v{VT3}")
    e(f"s_lshl_b32 s69, s{S_HKV}, 11")
    e("s_lshl_b32 s70, s77, 6")
    e("s_add_u32 s69, s69, s70")
    e(f"v_mov_b32 v14, s{S_N}")
    e(f"v_mov_b32 v15, s{S_N+1}")
    e(f"s_cmp_lg_u32 s{S_SPLIT}, 0")
    e("s_cbranch_scc1 L_NOINIT")
    srd(44, 28, 64*256, WS_CNT)
    e(f"s_lshl_b32 s70, s{S_PAIR}, 8")
    e("v_mov_b32 v12, 32")
    e("v_mov_b32 v13, 0")
    e("s_mov_b64 exec, 1")
    e("buffer_store_dword v12, v13, s[44:47], s70 offen sc1")
    e("s_mov_b64 exec, -1")
    e("s_waitcnt vmcnt(0)")
    lbl("L_NOINIT")
    e("s_waitcnt lgkmcnt(0)")
    for i in range(1, 14):
        e(f"v_add_f32 v32, v32, v{32+2*i}")
        e(f"v_add_f32 v33, v33, v{33+2*i}")
    e("v_cvt_pk_bf16_f32 v12, v32, v33")
    e("s_nop 1")
    e(f"v_mov_b32_dpp v13, v12 quad_perm:[1,0,3,2] {DPPM}")
    e("s_mov_b32 exec_lo, 0x55555555")
    e("s_mov_b32 exec_hi, 0x55555555")
    e(f"buffer_store_dwordx4 v[12:15], v{VT3}, s[40:43], s69 offen sc1")
    e("s_mov_b64 exec, -1")
    stamp()
    e(f"v_lshlrev_b32 v{VT3}, 4, v1")
    e(f"s_lshl_b32 s69, s{S_PAIR}, 11")
    def iss():
        e(f"buffer_load_dwordx4 v[32:35], v{VT3}, s[40:43], s69 offen sc1")
        e(f"buffer_load_dwordx4 v[36:39], v{VT3}, s[40:43], s69 offen offset:1024 sc1")
    poll("L_H0", iss, [32, 36], sleep=2)
    stamp()
    e(f"v_lshlrev_b32 v{VT3}, 3, v1")
    e(f"v_add_u32 v{VT3}, {L_QL}, v{VT3}")
    e(f"ds_write_b64 v{VT3}, v[32:33]")
    e(f"ds_write_b64 v{VT3}, v[36:37] offset:512")
    e("s_waitcnt lgkmcnt(0)")
    lbl("L_JOIN")
    e("s_barrier")
    stamp()
    e(f"v_and_b32 v{VT1}, 15, v1")
    e(f"v_lshrrev_b32 v{VT2}, 4, v1")
    e(f"v_and_b32 v{VT3}, 7, v{VT1}")
    e(f"v_lshrrev_b32 v{VT4}, 2, v{VT3}")
    e(f"v_lshlrev_b32 v{VT4}, 9, v{VT4}")
    e(f"v_lshl_add_u32 v{VT4}, v{VT2}, 6, v{VT4}")
    e(f"v_and_b32 v{VT3}, 3, v{VT1}")
    e(f"v_lshl_add_u32 v{VT4}, v{VT3}, 4, v{VT4}")
    e(f"v_add_u32 v{VT4}, {L_QL}, v{VT4}")
    e(f"ds_read_b128 v[{QB}:{QB+3}], v{VT4}")
    e(f"ds_read_b128 v[{QB+4}:{QB+7}], v{VT4} offset:256")
    srd(8, 28, 64*256, WS_CNT)
    e(f"s_lshl_b32 s{S_CO}, s{S_PAIR}, 8")
    loads_K()
    e(f"v_mov_b32 v{VAT}, 1")
    e("s_mov_b64 exec, 1")
    e(f"buffer_atomic_add v{VAT}, v{VZ}, s[8:11], s{S_CO} offen sc0")
    e("s_mov_b64 exec, -1")
    loads_V()
    e(f"s_cmp_lt_u32 s{S_WAVE}, 4")
    e("s_cbranch_scc1 L_NODMA")
    srd(40, 12, 4096*448*2)
    e(f"v_mul_u32_u24 v{VT3}, 4682, v1")
    e(f"v_lshrrev_b32 v{VT3}, 16, v{VT3}")
    e(f"v_mul_u32_u24 v{VT2}, 672, v{VT3}")
    e(f"v_lshl_add_u32 v{VT2}, v1, 4, v{VT2}")
    e(f"s_sub_u32 s69, s{S_WAVE}, 4")
    e("s_mul_i32 s70, s69, 28672")
    e(f"s_lshl_b32 s71, s{S_HKV}, 2")
    e("s_add_u32 s71, s71, s69")
    e("s_mul_i32 s71, s71, 114688")
    e(f"s_mul_i32 s72, s{S_SPLIT}, 224")
    e("s_add_u32 s71, s71, s72")
    e("s_mov_b32 s72, 0")
    e("s_mov_b32 exec_hi, 0x00ffffff")
    lbl("L_WODMA")
    e("s_mov_b32 m0, s70")
    e("s_add_u32 s70, s70, 896")
    e(f"buffer_load_dwordx4 v{VT2}, s[40:43], s71 offen lds")
    e("s_add_u32 s71, s71, 3584")
    e("s_add_u32 s72, s72, 1")
    e("s_cmp_lt_u32 s72, 32")
    e("s_cbranch_scc1 L_WODMA")
    e("s_mov_b64 exec, -1")
    lbl("L_NODMA")
    for r in range(64):
        e(f"v_mov_b32 v{OB+r}, 0")
    e(f"v_mov_b32 v{VM}, 0xff7fffff")
    e(f"v_mov_b32 v{VL}, 0")
    e(f"v_mov_b32 v{VMC}, 0")
    e(f"v_cmp_gt_u32 vcc, 8, v{VT1}")
    e("s_waitcnt lgkmcnt(0)")
    e("s_nop 0")
    for r in range(8):
        e(f"v_cndmask_b32 v{QB+r}, 0, v{QB+r}, vcc")
    e(f"s_mov_b32 s{S_CNT}, 0")
    srd(40, 16, 3584)
    srd(44, 18, 3584)
    srd(48, 20, 3584)
    srd(52, 22, 2)
    srd(56, 4, 8*448*2)
    lbl("L_LOOP")
    e("s_waitcnt vmcnt(17)")
    for jj in range(2):
        for i in range(8):
            d = TB + i*4
            kk = KB + (i*2+jj)*4
            c = "0" if jj == 0 else f"v[{d}:{d+3}]"
            e(f"v_mfma_f32_16x16x32_bf16 v[{d}:{d+3}], v[{kk}:{kk+3}], v[{QB+jj*4}:{QB+jj*4+3}], {c}")
    e("s_waitcnt vmcnt(16)")
    e(f"v_readfirstlane_b32 s69, v{VAT}")
    e("s_cmp_ge_u32 s69, 256")
    e("s_cbranch_scc1 L_LASTK")
    e("s_lshl_b32 s69, s69, 14")
    e(f"s_add_u32 s{S_BASE}, s{S_PB}, s69")
    loads_K()
    e(f"v_mov_b32 v{VAT}, 1")
    e("s_mov_b64 exec, 1")
    e(f"buffer_atomic_add v{VAT}, v{VZ}, s[8:11], s{S_CO} offen sc0")
    e("s_mov_b64 exec, -1")
    e("s_branch L_AFTK")
    lbl("L_LASTK")
    e(f"s_mov_b32 s{S_CNT}, 1")
    e(f"v_mul_u32_u24 v{VT1}, 56, v1")
    for base, sr in [(32, 40), (46, 44), (60, 48)]:
        for i in range(7):
            e(f"buffer_load_dwordx2 v[{base+2*i}:{base+2*i+1}], v{VT1}, s[{sr}:{sr+3}], 0 offen offset:{i*8}")
    e(f"v_lshlrev_b32 v{VT1}, 1, v0")
    e(f"s_mul_i32 s69, s{S_B}, 896")
    e(f"buffer_load_ushort v74, v{VT1}, s[56:59], s69 offen")
    e(f"v_mov_b32 v{VT1}, 0")
    e(f"buffer_load_ushort v75, v{VT1}, s[52:55], 0 offen")
    lbl("L_AFTK")
    for i in range(8):
        d = TB + i*4
        e(f"v_mov_b32_dpp v{SB+i}, v{d} quad_perm:[0,0,0,0] {DPPM}")
        e(f"v_add_f32_dpp v{SB+i}, v{d+1}, v{SB+i} quad_perm:[1,1,1,1] {DPPM}")
        e(f"v_add_f32_dpp v{SB+i}, v{d+2}, v{SB+i} quad_perm:[2,2,2,2] {DPPM}")
        e(f"v_add_f32_dpp v{SB+i}, v{d+3}, v{SB+i} quad_perm:[3,3,3,3] {DPPM}")
    for i in range(0, 8, 2):
        e(f"v_cvt_pk_bf16_f32 v{VT1}, v{SB+i}, v{SB+i+1}")
        e(f"v_lshlrev_b32 v{SB+i}, 16, v{VT1}")
        e(f"v_and_b32 v{SB+i+1}, 0xffff0000, v{VT1}")
    e(f"v_max3_f32 v{VT1}, v{SB}, v{SB+1}, v{SB+2}")
    e(f"v_max3_f32 v{VT1}, v{VT1}, v{SB+3}, v{SB+4}")
    e(f"v_max3_f32 v{VT1}, v{VT1}, v{SB+5}, v{SB+6}")
    e(f"v_max_f32 v{VT1}, v{VT1}, v{SB+7}")
    e(f"v_cmp_gt_f32 vcc, v{VT1}, v{VM}")
    e("s_cbranch_vccz L_FAST")
    for sw in ["v_permlane16_swap_b32", "v_permlane32_swap_b32"]:
        e(f"v_mov_b32 v{VT2}, v{VT1}")
        e(f"v_mov_b32 v{VT3}, v{VT1}")
        e("s_nop 1")
        e(f"{sw} v{VT2}, v{VT3}")
        e("s_nop 1")
        e(f"v_max_f32 v{VT1}, v{VT2}, v{VT3}")
    e(f"v_max_f32 v{VT1}, v{VT1}, v{VM}")
    e(f"v_sub_f32 v{VT2}, v{VM}, v{VT1}")
    e(f"v_mul_f32 v{VT2}, s{S_C}, v{VT2}")
    e(f"v_exp_f32 v{VT2}, v{VT2}")
    e(f"v_mov_b32 v{VM}, v{VT1}")
    e(f"v_mul_f32 v{VMC}, s{S_C}, v{VT1}")
    e(f"v_mul_f32 v{VL}, v{VL}, v{VT2}")
    e(f"ds_bpermute_b32 v{VT3}, v{VBP}, v{VT2}")
    e("s_waitcnt lgkmcnt(0)")
    for r in range(64):
        e(f"v_mul_f32 v{OB+r}, v{OB+r}, v{VT3}")
    lbl("L_FAST")
    for i in range(8):
        e(f"v_fma_f32 v{SB+i}, v{SB+i}, s{S_C}, -v{VMC}")
    for i in range(8):
        e(f"v_exp_f32 v{SB+i}, v{SB+i}")
    e("s_nop 0")
    for i in range(0, 8, 2):
        e(f"v_cvt_pk_bf16_f32 v{PB+i//2}, v{SB+i}, v{SB+i+1}")
    e(f"v_add_f32 v{VT1}, v{SB}, v{SB+1}")
    e(f"v_add_f32 v{VT2}, v{SB+2}, v{SB+3}")
    e(f"v_add_f32 v{VT3}, v{SB+4}, v{SB+5}")
    e(f"v_add_f32 v{VT1}, v{VT1}, v{VT2}")
    e(f"v_add_f32 v{VT2}, v{SB+6}, v{SB+7}")
    e(f"v_add_f32 v{VT3}, v{VT3}, v{VT2}")
    e(f"v_add_f32 v{VT1}, v{VT1}, v{VT3}")
    e(f"v_add_f32 v{VL}, v{VL}, v{VT1}")
    e(f"s_cmp_eq_u32 s{S_CNT}, 1")
    e("s_cbranch_scc0 L_W16")
    e("s_waitcnt vmcnt(0)")
    lbl("L_W16")
    e("s_waitcnt vmcnt(17)")
    for h in range(2):
        for w in range(4):
            for p in range(4):
                a = VB + (h*8+2*p)*4 + w
                b = VB + (h*8+2*p+1)*4 + w
                e(f"v_perm_b32 v{TB+(2*w)*4+p}, v{b}, v{a}, s{S_SLO}")
                e(f"v_perm_b32 v{TB+(2*w+1)*4+p}, v{b}, v{a}, s{S_SHI}")
        if h == 1:
            e(f"s_cmp_eq_u32 s{S_CNT}, 1")
            e("s_cbranch_scc1 L_SKIPV")
            loads_V()
            lbl("L_SKIPV")
        e("s_nop 1")
        for j in range(8):
            o = OB + (h*8+j)*4
            e(f"v_mfma_f32_16x16x32_bf16 v[{o}:{o+3}], v[{PB}:{PB+3}], v[{TB+j*4}:{TB+j*4+3}], v[{o}:{o+3}]")
    e(f"s_cmp_eq_u32 s{S_CNT}, 0")
    e("s_cbranch_scc1 L_LOOP")
    stamp()
    if STAMP:
        e("s_waitcnt lgkmcnt(0)")
        srd(56, 28, 65536, 0x210000)
        e("s_lshl_b32 s69, s2, 3")
        e(f"s_add_u32 s69, s69, s{S_WAVE}")
        e("s_lshl_b32 s69, s69, 2")
        e(f"v_mov_b32 v{VT1}, s{80+2*(nstamp[0]-1)}")
        e(f"v_mov_b32 v{VT2}, 0")
        e(f"buffer_store_dword v{VT1}, v{VT2}, s[56:59], s69 offen")
    for sw in ["v_permlane16_swap_b32", "v_permlane32_swap_b32"]:
        e(f"v_mov_b32 v{VT2}, v{VL}")
        e(f"v_mov_b32 v{VT3}, v{VL}")
        e("s_nop 1")
        e(f"{sw} v{VT2}, v{VT3}")
        e("s_nop 1")
        e(f"v_add_f32 v{VL}, v{VT2}, v{VT3}")
    e(f"v_and_b32 v{VT1}, 15, v1")
    e(f"v_lshrrev_b32 v{VT2}, 4, v1")
    e(f"v_lshlrev_b32 v{VT3}, 10, v{VT2}")
    e(f"v_lshl_add_u32 v{VT3}, v{VT1}, 5, v{VT3}")
    e(f"s_lshl_b32 s69, s{S_WAVE}, 11")
    e(f"s_add_u32 s69, s69, {L_CMB}")
    e(f"v_add_u32 v{VT3}, s69, v{VT3}")
    e("v_cmp_gt_u32 vcc, 32, v1")
    e("s_and_saveexec_b64 s[72:73], vcc")
    for h in range(2):
        for j in range(8):
            e(f"ds_write_b32 v{VT3}, v{OB+(h*8+j)*4} offset:{(h*128+j)*4}")
    e("s_mov_b64 exec, s[72:73]")
    e(f"v_lshlrev_b32 v{VT3}, 1, v1")
    e(f"s_lshl_b32 s69, s{S_WAVE}, 4")
    e(f"s_add_u32 s69, s69, {L_ML}")
    e(f"v_add_u32 v{VT3}, s69, v{VT3}")
    e(f"v_and_b32 v{VT1}, 0xfb, v1")
    e(f"v_cmp_eq_u32 vcc, 0, v{VT1}")
    e("s_and_saveexec_b64 s[72:73], vcc")
    e(f"ds_write_b64 v{VT3}, v[{VM}:{VM+1}]")
    e("s_mov_b64 exec, s[72:73]")
    srd(40, 28, 256*PG_STRIDE, WS_PG)
    srd(52, 28, 64*3584, WS_OG)
    e("v_lshrrev_b32 v2, 8, v0")
    e("v_lshlrev_b32 v3, 3, v2")
    e(f"v_add_u32 v3, {L_ML}, v3")
    e("v_lshlrev_b32 v4, 2, v0")
    e(f"v_add_u32 v5, {L_CMB}, v4")
    e("v_and_b32 v9, 0xfffffffe, v0")
    e("v_lshlrev_b32 v9, 3, v9")
    e(f"v_mov_b32 v14, s{S_N}")
    e(f"v_mov_b32 v15, s{S_N+1}")
    e(f"v_mov_b32 v18, s{S_N}")
    e(f"v_mov_b32 v19, s{S_N+1}")
    e("s_waitcnt lgkmcnt(0)")
    e("s_barrier")
    for w in range(8):
        e(f"ds_read_b64 v[{96+2*w}:{97+2*w}], v3 offset:{w*16}")
    for w in range(8):
        e(f"ds_read_b32 v{112+w}, v5 offset:{w*2048}")
    e(f"s_lshl_b32 s69, s{S_PAIR}, 2")
    e(f"s_add_u32 s69, s69, s{S_SPLIT}")
    e(f"s_mul_i32 s69, s69, {PG_STRIDE}")
    e("v_lshlrev_b32 v8, 4, v2")
    e("v_add_u32 v8, 4096, v8")
    e("s_waitcnt lgkmcnt(0)")
    e("v_max3_f32 v16, v96, v98, v100")
    e("v_max3_f32 v16, v16, v102, v104")
    e("v_max3_f32 v16, v16, v106, v108")
    e("v_max_f32 v16, v16, v110")
    for w in range(8):
        e(f"v_sub_f32 v{96+2*w}, v{96+2*w}, v16")
        e(f"v_mul_f32 v{96+2*w}, s{S_C}, v{96+2*w}")
        e(f"v_exp_f32 v{96+2*w}, v{96+2*w}")
    e("s_nop 0")
    e("v_mul_f32 v17, v96, v97")
    e("v_mul_f32 v12, v96, v112")
    for w in range(1, 8):
        e(f"v_fmac_f32 v17, v{96+2*w}, v{97+2*w}")
        e(f"v_fmac_f32 v12, v{96+2*w}, v{112+w}")
    e("s_nop 1")
    e(f"v_mov_b32_dpp v13, v12 quad_perm:[1,0,3,2] {DPPM}")
    e("s_mov_b32 exec_lo, 0x55555555")
    e("s_mov_b32 exec_hi, 0x55555555")
    e("buffer_store_dwordx4 v[12:15], v9, s[40:43], s69 offen sc1")
    e("s_mov_b64 exec, -1")
    e("v_and_b32 v6, 255, v0")
    e("v_cmp_eq_u32 vcc, 0, v6")
    e("s_and_saveexec_b64 s[72:73], vcc")
    e("buffer_store_dwordx4 v[16:19], v8, s[40:43], s69 offen sc1")
    e("s_mov_b64 exec, s[72:73]")
    e("v_mul_u32_u24 v12, 4682, v0")
    e("v_lshrrev_b32 v12, 16, v12")
    e("v_mul_u32_u24 v13, 14, v12")
    e("v_sub_u32 v13, v0, v13")
    e("v_mul_u32_u24 v20, 3584, v12")
    e("v_lshl_add_u32 v20, v13, 4, v20")
    e("v_lshlrev_b32 v21, 7, v12")
    e(f"v_add_u32 v21, {L_OL}, v21")
    e("v_mul_u32_u24 v22, 448, v12")
    e("v_lshl_add_u32 v22, v13, 5, v22")
    e(f"v_add_u32 v22, {L_CMB}, v22")
    e("v_lshlrev_b32 v6, 3, v0")
    e(f"v_add_u32 v6, {L_OL}, v6")
    e(f"s_mul_i32 s69, s{S_PAIR}, {4*PG_STRIDE}")
    e(f"s_cmp_lg_u32 s{S_WAVE}, 0")
    e("s_cbranch_scc1 L_H1_DONE")
    e("v_lshrrev_b32 v10, 1, v1")
    e(f"v_mul_u32_u24 v10, {PG_STRIDE}, v10")
    e("v_and_b32 v11, 1, v1")
    e("v_lshl_add_u32 v10, v11, 4, v10")
    e("v_add_u32 v10, 4096, v10")
    e("v_lshlrev_b32 v11, 3, v1")
    e(f"v_add_u32 v11, {L_ML2}, v11")
    e("s_mov_b64 exec, 0xff")
    poll("L_H1", lambda: e("buffer_load_dwordx4 v[96:99], v10, s[40:43], s69 offen sc1"), [96], sleep=6)
    e("ds_write_b64 v11, v[96:97]")
    e("s_mov_b64 exec, -1")
    e("s_waitcnt lgkmcnt(0)")
    lbl("L_H1_DONE")
    e("s_barrier")
    stamp()
    e("v_lshlrev_b32 v3, 3, v2")
    e(f"v_add_u32 v3, {L_ML2}, v3")
    for s in range(4):
        e(f"ds_read_b64 v[{112+2*s}:{113+2*s}], v3 offset:{s*16}")
    def iss2():
        e("s_mov_b32 s70, s69")
        for s in range(4):
            e(f"buffer_load_dwordx4 v[{96+4*s}:{99+4*s}], v9, s[40:43], s70 offen sc1")
            e(f"s_add_u32 s70, s70, {PG_STRIDE}")
    poll("L_T2", iss2, [96, 100, 104, 108], sleep=1)
    e("v_and_b32 v7, 1, v0")
    e("v_cmp_eq_u32 vcc, 1, v7")
    e("s_waitcnt lgkmcnt(0)")
    e("s_nop 0")
    for s in range(4):
        e(f"v_cndmask_b32 v{96+4*s}, v{96+4*s}, v{97+4*s}, vcc")
    e("v_max3_f32 v10, v112, v114, v116")
    e("v_max_f32 v10, v10, v118")
    for s in range(4):
        e(f"v_sub_f32 v{112+2*s}, v{112+2*s}, v10")
        e(f"v_mul_f32 v{112+2*s}, s{S_C}, v{112+2*s}")
        e(f"v_exp_f32 v{112+2*s}, v{112+2*s}")
    e("s_nop 0")
    e("v_mul_f32 v11, v112, v113")
    e("v_mul_f32 v7, v112, v96")
    for s in range(1, 4):
        e(f"v_fmac_f32 v11, v{112+2*s}, v{113+2*s}")
        e(f"v_fmac_f32 v7, v{112+2*s}, v{96+4*s}")
    e("v_rcp_f32 v10, v11")
    e("s_nop 0")
    e("v_mul_f32 v8, v7, v10")
    e("v_fma_f32 v7, -v8, v11, v7")
    e("v_fma_f32 v8, v7, v10, v8")
    e("v_cvt_pk_bf16_f32 v8, v8, v8")
    e("v_lshlrev_b32 v11, 16, v8")
    e("v_and_b32 v10, 0xffff, v8")
    e("ds_write_b64 v6, v[10:11]")
    e("s_waitcnt lgkmcnt(0)")
    e("s_barrier")
    e(f"s_cmp_eq_u32 s{S_WAVE}, 7")
    e("s_cbranch_scc1 L_T3SKIP")
    for i in range(16):
        e(f"ds_read_b128 v[{96+4*i}:{99+4*i}], v20 offset:{i*224}")
    for i in range(8):
        e(f"ds_read_b128 v[{160+4*i}:{163+4*i}], v21 offset:{i*16}")
    for j in range(8):
        e(f"v_mov_b32 v{192+j}, 0")
    e("s_waitcnt lgkmcnt(0)")
    for i in range(16):
        lo, hi = 160 + 2*i, 161 + 2*i
        for w in range(4):
            e(f"v_dot2_f32_bf16 v{192+2*w}, v{96+4*i+w}, v{lo}, v{192+2*w}")
            e(f"v_dot2_f32_bf16 v{193+2*w}, v{96+4*i+w}, v{hi}, v{193+2*w}")
    e("s_nop 2")
    e("ds_write_b128 v22, v[192:195]")
    e("ds_write_b128 v22, v[196:199] offset:16")
    lbl("L_T3SKIP")
    e("s_waitcnt lgkmcnt(0)")
    e("s_barrier")
    e(f"s_mul_i32 s69, s{S_B}, {8*3584}")
    e(f"s_cmp_ge_u32 s{S_WAVE}, 2")
    e("s_cbranch_scc1 L_T3B")
    for ks in range(32):
        e(f"ds_read_b32 v{96+ks}, v5 offset:{ks*448}")
    e(f"s_mul_i32 s70, s{S_HKV}, 3584")
    e(f"s_mul_i32 s71, s{S_SPLIT}, 896")
    e("s_add_u32 s70, s70, s71")
    e("s_add_u32 s70, s70, s69")
    e("v_cmp_gt_u32 vcc, 112, v0")
    e("s_and_b32 vcc_lo, vcc_lo, 0x55555555")
    e("s_and_b32 vcc_hi, vcc_hi, 0x55555555")
    e("s_waitcnt lgkmcnt(0)")
    for st in [16, 8, 4, 2]:
        for i in range(st):
            e(f"v_add_f32 v{96+i}, v{96+i}, v{96+st+i}")
    e("v_add_f32 v12, v96, v97")
    e("s_nop 1")
    e(f"v_mov_b32_dpp v13, v12 quad_perm:[1,0,3,2] {DPPM}")
    e("s_and_saveexec_b64 s[72:73], vcc")
    e("buffer_store_dwordx4 v[12:15], v9, s[52:55], s70 offen sc1")
    e("s_mov_b64 exec, s[72:73]")
    lbl("L_T3B")
    e(f"s_cmp_lg_u32 s{S_WAVE}, 0")
    e("s_cbranch_scc1 L_H2_DONE")
    e("v_mul_u32_u24 v10, 896, v1")
    e("v_add_u32 v10, 880, v10")
    e("s_mov_b32 exec_hi, 0")
    poll("L_H2", lambda: e("buffer_load_dwordx4 v[96:99], v10, s[52:55], s69 offen sc1"), [96], sleep=6)
    e("s_mov_b64 exec, -1")
    lbl("L_H2_DONE")
    e("s_barrier")
    stamp()
    e(f"s_cmp_eq_u32 s{S_WAVE}, 7")
    e("s_cbranch_scc1 L_T4SKIP")
    for (src, dst) in [(32, 128), (46, 156), (60, 184)]:
        for i in range(14):
            e(f"v_lshlrev_b32 v{dst+2*i}, 16, v{src+i}")
            e(f"v_and_b32 v{dst+2*i+1}, 0xffff0000, v{src+i}")
    def iss4():
        e("s_mov_b32 s70, s69")
        for p in range(8):
            e(f"buffer_load_dwordx4 v[{96+4*p}:{99+4*p}], v9, s[52:55], s70 offen sc1")
            e("s_add_u32 s70, s70, 3584")
    poll("L_T4", iss4, [96+4*p for p in range(8)], sleep=1)
    e("v_and_b32 v7, 1, v0")
    e("v_cmp_eq_u32 vcc, 1, v7")
    e(f"v_add_u32 v5, {L_H}, v4")
    e("s_nop 0")
    for p in range(8):
        e(f"v_cndmask_b32 v{96+4*p}, v{96+4*p}, v{97+4*p}, vcc")
    e("v_add_f32 v96, v96, v100")
    e("v_add_f32 v104, v104, v108")
    e("v_add_f32 v112, v112, v116")
    e("v_add_f32 v120, v120, v124")
    e("v_add_f32 v96, v96, v104")
    e("v_add_f32 v112, v112, v120")
    e("v_add_f32 v96, v96, v112")
    round_bf16(96, 97)
    e("v_lshlrev_b32 v74, 16, v74")
    e("v_add_f32 v96, v96, v74")
    round_bf16(96, 97)
    e("ds_write_b32 v5, v96")
    e("s_waitcnt lgkmcnt(0)")
    lbl("L_T4SKIP")
    e("s_barrier")
    e(f"s_cmp_eq_u32 s{S_WAVE}, 7")
    e("s_cbranch_scc1 L_END")
    e("v_lshlrev_b32 v6, 2, v1")
    e(f"v_add_u32 v6, {L_H}, v6")
    xs = list(range(10, 17))
    for i in range(7):
        e(f"ds_read_b32 v{xs[i]}, v6 offset:{i*256}")
    e(f"s_lshl_b32 s69, s{S_SPLIT}, 3")
    e(f"s_add_u32 s69, s69, s{S_HKV}")
    e("s_mul_i32 s69, s69, 14")
    e(f"s_lshl_b32 s70, s{S_WAVE}, 1")
    e("s_add_u32 s69, s69, s70")
    e("s_lshl_b32 s70, s69, 2")
    e(f"s_add_u32 s70, s70, {L_H}")
    e("v_mov_b32 v7, s70")
    e("ds_read_b64 v[34:35], v7")
    e("s_waitcnt lgkmcnt(0)")
    layernorm_wave(xs, 448, 2)
    layernorm_wave(xs, 448, 2)
    e("s_and_b32 s70, s69, 63")
    e("s_lshr_b32 s71, s69, 6")
    e("s_add_u32 s74, s69, 1")
    e("s_and_b32 s75, s74, 63")
    e("s_lshr_b32 s76, s74, 6")
    e("v_mov_b32 v36, v10")
    e("v_mov_b32 v37, v10")
    for i in range(1, 7):
        e(f"s_cmp_eq_u32 s71, {i}")
        e("s_cselect_b64 s[72:73], -1, 0")
        e(f"v_cndmask_b32 v36, v36, v{10+i}, s[72:73]")
        e(f"s_cmp_eq_u32 s76, {i}")
        e("s_cselect_b64 s[72:73], -1, 0")
        e(f"v_cndmask_b32 v37, v37, v{10+i}, s[72:73]")
    e("s_nop 1")
    e("v_readlane_b32 s40, v36, s70")
    e("v_readlane_b32 s41, v37, s75")
    k1 = -2.0*0.7978845608028654*1.4426950408889634
    k2 = k1*0.044715
    e(f"s_mov_b32 s42, {hexf(k1)}")
    e(f"s_mov_b32 s43, {hexf(k2)}")
    e("v_mov_b32 v40, 0")
    e("v_mov_b32 v41, 0")
    e("v_mov_b32 v42, s42")
    stamp()
    for i in range(28):
        for o in range(2):
            u, a = 44+o*4, 45+o*4
            e(f"v_fma_f32 v{u}, s{40+o}, v{128+i}, v{156+i}")
            e(f"v_mul_f32 v{a}, v{u}, v{u}")
            e(f"v_fma_f32 v{a}, s43, v{a}, v42")
            e(f"v_mul_f32 v{a}, v{a}, v{u}")
        for o in range(2):
            e(f"v_exp_f32 v{45+o*4}, v{45+o*4}")
        for o in range(2):
            e(f"v_add_f32 v{45+o*4}, 1.0, v{45+o*4}")
        for o in range(2):
            e(f"v_rcp_f32 v{45+o*4}, v{45+o*4}")
        for o in range(2):
            e(f"v_mul_f32 v{44+o*4}, v{44+o*4}, v{184+i}")
        for o in range(2):
            e(f"v_fmac_f32 v{40+o}, v{44+o*4}, v{45+o*4}")
    wave_allreduce(40, 44, 45)
    wave_allreduce(41, 44, 45)
    e("v_lshlrev_b32 v75, 16, v75")
    for o in range(2):
        round_bf16(40+o, 44)
        e(f"v_add_f32 v{40+o}, v{40+o}, v75")
        round_bf16(40+o, 44)
        e(f"v_add_f32 v{40+o}, v{40+o}, v{34+o}")
    e("v_cvt_pk_bf16_f32 v40, v40, v41")
    srd(56, 24, 8*448*2)
    e(f"s_mul_i32 s70, s{S_B}, 448")
    e("s_add_u32 s70, s70, s69")
    e("s_lshl_b32 s70, s70, 1")
    e("v_mov_b32 v7, 0")
    e("v_cmp_eq_u32 vcc, 0, v1")
    e("s_and_saveexec_b64 s[72:73], vcc")
    e("buffer_store_dword v40, v7, s[56:59], s70 offen")
    if STAMP:
        stamp()
        e("s_waitcnt lgkmcnt(0) vmcnt(0)")
        e(f"s_cmp_lg_u32 s{S_WAVE}, 0")
        e("s_cbranch_scc1 L_END")
        srd(56, 28, 65536, 0x200000)
        e("s_lshl_b32 s69, s2, 6")
        for i in range(nstamp[0]):
            e(f"s_sub_u32 s70, s{80+2*i}, s80")
            e("v_mov_b32 v2, s70")
            e(f"buffer_store_dword v2, v7, s[56:59], s69 offen offset:{i*4}")
        e("v_mov_b32 v2, s80")
        e(f"buffer_store_dword v2, v7, s[56:59], s69 offen offset:60")
    lbl("L_END")
    e("s_endpgm")
    e('.section .rodata,"a"')
    e(".p2align 6")
    e(f".amdhsa_kernel {k}")
    e("  .amdhsa_next_free_vgpr 256")
    e("  .amdhsa_next_free_sgpr 102")
    e("  .amdhsa_accum_offset 256")
    e("  .amdhsa_group_segment_fixed_size 0")
    e("  .amdhsa_kernarg_size 104")
    e("  .amdhsa_user_sgpr_count 2")
    e("  .amdhsa_user_sgpr_kernarg_segment_ptr 1")
    e("  .amdhsa_system_sgpr_workgroup_id_x 1")
    e(".end_amdhsa_kernel")

hdr = open(f"cdna_kernels/{NAME}.s.ref").read().split("\n")
for h in hdr:
    if h.startswith(";") and "@launch" not in h and "Override launch" not in h and "grid=ceil" not in h:
        e(h)
e(f"; @launch grid=(256,1,1) block=(512,1,1) lds={L_END}")
e('.amdgcn_target "amdgcn-amd-amdhsa--gfx950"')
gen()
open(OUT, "w").write("\n".join(L) + "\n")
print("wrote", OUT, len(L), "lines; lds", L_END)
```

```python
import sys, struct
NAME = "sequential_preLN__gqa_block_cached__mixer_token_mlp__decode"
OUT = sys.argv[1] if len(sys.argv) > 1 else f"cdna_kernels/{NAME}.s"
STAMP = len(sys.argv) > 2 and sys.argv[2] == "stamp"

WS_QG = 0x0
WS_PG = 0x20000
PG_STRIDE = 258*16
WS_OG = 0x130000
WS_CNT = 0x170000
L_WOQ = 0
L_XN  = 114688
L_QL  = L_XN + 7168
L_CMB = L_QL + 1024
L_ML  = L_CMB + 16384
L_OL  = L_ML + 128
L_H   = L_OL + 4096
L_NON = L_H + 1792
L_ML2 = L_NON + 16
L_END = L_ML2 + 64

L = []
def e(s=""): L.append(s)
def lbl(s): L.append(s + ":")
C_SCALE = 0.0625 * 1.4426950408889634
def f2u(x): return struct.unpack("<I", struct.pack("<f", x))[0]
def hexf(x): return "0x%08x" % f2u(x)
DPPM = "row_mask:0xf bank_mask:0xf"
nstamp = [0]
def stamp():
    if STAMP:
        n = nstamp[0]; nstamp[0] += 1
        e(f"s_memrealtime s[{80+2*n}:{81+2*n}]")

def wave_allreduce(v, t1, t2, op="add"):
    ins = {"add": "v_add_f32", "max": "v_max_f32"}[op]
    for mod in ["quad_perm:[1,0,3,2]", "quad_perm:[2,3,0,1]", "row_half_mirror", "row_mirror"]:
        e("s_nop 1")
        e(f"{ins}_dpp v{v}, v{v}, v{v} {mod} {DPPM}")
    for sw in ["v_permlane16_swap_b32", "v_permlane32_swap_b32"]:
        e(f"v_mov_b32 v{t1}, v{v}")
        e(f"v_mov_b32 v{t2}, v{v}")
        e("s_nop 1")
        e(f"{sw} v{t1}, v{t2}")
        e("s_nop 1")
        e(f"{ins} v{v}, v{t1}, v{t2}")

def srd(d, b, nbytes, off=0):
    if off:
        e(f"s_add_u32 s{d}, s{b}, {off}")
        e(f"s_addc_u32 s{d+1}, s{b+1}, 0")
        e(f"s_and_b32 s{d+1}, s{d+1}, 0xffff")
    else:
        e(f"s_mov_b32 s{d}, s{b}")
        e(f"s_and_b32 s{d+1}, s{b+1}, 0xffff")
    e(f"s_mov_b32 s{d+2}, {nbytes}")
    e(f"s_mov_b32 s{d+3}, 0x00020000")

def round_bf16(v, t):
    e(f"v_cvt_pk_bf16_f32 v{t}, v{v}, v{v}")
    e(f"v_lshlrev_b32 v{v}, 16, v{t}")

def layernorm_wave(xs, n, t, eps=1e-5):
    s, a, b, m, c, d = t, t+1, t+2, t+3, t+4, t+5
    e(f"v_mov_b32 v{s}, v{xs[0]}")
    for x in xs[1:]:
        e(f"v_add_f32 v{s}, v{s}, v{x}")
    wave_allreduce(s, a, b)
    e(f"v_mul_f32 v{m}, {hexf(1.0/n)}, v{s}")
    e(f"v_sub_f32 v{c}, v{xs[0]}, v{m}")
    e(f"v_mul_f32 v{s}, v{c}, v{c}")
    for x in xs[1:]:
        e(f"v_sub_f32 v{c}, v{x}, v{m}")
        e(f"v_fmac_f32 v{s}, v{c}, v{c}")
    wave_allreduce(s, a, b)
    e(f"v_mul_f32 v{s}, {hexf(1.0/n)}, v{s}")
    round_bf16(m, a)
    round_bf16(s, a)
    e(f"v_add_f32 v{s}, {hexf(eps)}, v{s}")
    round_bf16(s, a)
    e(f"v_sqrt_f32 v{s}, v{s}")
    e("s_nop 0")
    round_bf16(s, a)
    e(f"v_rcp_f32 v{d}, v{s}")
    e("s_nop 0")
    for x in xs:
        e(f"v_sub_f32 v{x}, v{x}, v{m}")
        round_bf16(x, a)
        e(f"v_mul_f32 v{c}, v{x}, v{d}")
        e(f"v_fma_f32 v{a}, -v{c}, v{s}, v{x}")
        e(f"v_fma_f32 v{x}, v{a}, v{d}, v{c}")
        round_bf16(x, a)

KB, VB, TB, OB = 32, 96, 160, 192
QB, SB, PB = 2, 10, 18
VM, VL, VMC, VKO, VVO, VT1, VT2, VT3, VBP, VT4 = 22, 23, 24, 25, 26, 27, 28, 29, 30, 31
import os
WARM = int(os.environ.get("WARM","1"))
KNT = os.environ.get("KNT"," nt")
VNT = os.environ.get("VNT"," nt")
S_WAVE, S_HKV, S_B, S_SPLIT, S_PAIR, S_BASE, S_CNT, S_SLO, S_SHI, S_C = 3, 60, 61, 62, 63, 64, 65, 66, 67, 68
S_N = 78
S_PB = 15
VAT, VZ = 31, 1+0
S_CO = 14

def loads_K():
    for i in range(8):
        for jj in range(2):
            r = KB + (i*2+jj)*4
            e(f"buffer_load_dwordx4 v[{r}:{r+3}], v{VKO}, s[32:35], s{S_BASE} offen offset:{i*512+jj*256}{KNT}")
def loads_V():
    for h in range(2):
        for i in range(8):
            r = VB + (h*8+i)*4
            e(f"buffer_load_dwordx4 v[{r}:{r+3}], v{VVO}, s[36:39], s{S_BASE} offen offset:{i*512+h*256}{VNT}")

def poll(tag, issue, gregs, sleep=4):
    lbl(f"{tag}_RETRY")
    issue()
    e("s_waitcnt vmcnt(0)")
    e("s_mov_b64 s[72:73], exec")
    for g in gregs:
        e(f"v_cmp_eq_u64 vcc, s[{S_N}:{S_N+1}], v[{g+2}:{g+3}]")
        e("s_and_b64 s[72:73], s[72:73], vcc")
    e("s_cmp_eq_u64 s[72:73], exec")
    e(f"s_cbranch_scc1 {tag}_OK")
    e(f"s_sleep {sleep}")
    e(f"s_branch {tag}_RETRY")
    lbl(f"{tag}_OK")

def gen():
    k = f"{NAME}_kernel"
    e(".text"); e(f".globl {k}"); e(".p2align 8"); e(f".type {k},@function"); lbl(k)
    stamp()
    e("s_cmp_ge_u32 s2, 256")
    e("s_cbranch_scc1 L_END")
    e("s_load_dwordx8 s[4:11], s[0:1], 0")
    e("s_load_dwordx2 s[12:13], s[0:1], 32")
    e("s_load_dwordx8 s[16:23], s[0:1], 48")
    e("s_load_dwordx4 s[24:27], s[0:1], 80")
    e("s_load_dwordx2 s[28:29], s[0:1], 96")
    e("s_memrealtime s[74:75]")
    e(f"v_lshrrev_b32 v{VT4}, 6, v0")
    e("v_and_b32 v1, 63, v0")
    e(f"v_readfirstlane_b32 s{S_WAVE}, v{VT4}")
    e(f"s_lshr_b32 s{S_PAIR}, s2, 2")
    e(f"s_and_b32 s{S_SPLIT}, s2, 3")
    e(f"s_and_b32 s{S_HKV}, s{S_PAIR}, 7")
    e(f"s_lshr_b32 s{S_B}, s{S_PAIR}, 3")
    e(f"s_mov_b32 s{S_SLO}, 0x05040100")
    e(f"s_mov_b32 s{S_SHI}, 0x07060302")
    e(f"s_mov_b32 s{S_C}, {hexf(C_SCALE)}")
    e(f"s_lshl_b32 s{S_PB}, s{S_PAIR}, 22")
    e(f"s_lshl_b32 s69, s{S_SPLIT}, 17")
    e(f"s_add_u32 s{S_BASE}, s{S_PB}, s69")
    e(f"s_lshl_b32 s69, s{S_WAVE}, 14")
    e(f"s_add_u32 s{S_BASE}, s{S_BASE}, s69")
    e(f"v_and_b32 v{VT1}, 15, v1")
    e(f"v_lshrrev_b32 v{VT2}, 4, v1")
    e(f"v_lshrrev_b32 v{VT3}, 2, v{VT1}")
    e(f"v_lshlrev_b32 v{VKO}, 12, v{VT3}")
    e(f"v_lshl_add_u32 v{VKO}, v{VT2}, 6, v{VKO}")
    e(f"v_and_b32 v{VT3}, 3, v{VT1}")
    e(f"v_lshl_add_u32 v{VKO}, v{VT3}, 4, v{VKO}")
    e(f"v_lshlrev_b32 v{VVO}, 12, v{VT2}")
    e(f"v_lshl_add_u32 v{VVO}, v{VT1}, 4, v{VVO}")
    e(f"v_lshlrev_b32 v{VBP}, 4, v{VT2}")
    e("s_waitcnt lgkmcnt(0)")
    srd(32, 6, 0x10000000)
    srd(36, 8, 0x10000000)
    srd(40, 4, 8*448*2)
    srd(44, 10, 448*4096*2)
    srd(48, 26, 256)
    e(f"s_mul_i32 s69, s{S_WAVE}, 896")
    e(f"v_lshlrev_b32 v{VT3}, 1, v1")
    xs = list(range(10, 17))
    for i in range(7):
        e(f"buffer_load_ushort v{xs[i]}, v{VT3}, s[40:43], s69 offen offset:{i*128}")
    e(f"s_lshl_b32 s70, s{S_SPLIT}, 3")
    e(f"s_add_u32 s77, s70, s{S_B}")
    e(f"s_cmp_eq_u32 s{S_WAVE}, 7")
    e("s_cbranch_scc1 L_NONCE")
    e(f"v_lshrrev_b32 v{VT4}, 3, v1")
    e(f"v_lshlrev_b32 v{VT4}, 16, v{VT4}")
    e(f"v_and_b32 v{VT3}, 7, v1")
    e(f"v_lshl_add_u32 v{VT4}, v{VT3}, 2, v{VT4}")
    e("s_lshl_b32 s70, s77, 5")
    e(f"s_lshl_b32 s71, s{S_HKV}, 10")
    e("s_add_u32 s70, s70, s71")
    e(f"s_lshl_b32 s71, s{S_WAVE}, 19")
    e("s_add_u32 s71, s71, s70")
    for i in range(8):
        e(f"buffer_load_dword v{160+i}, v{VT4}, s[44:47], s71 offen")
        e("s_add_u32 s71, s71, 8192")
    if WARM:
        e(f"s_cmp_lg_u32 s{S_WAVE}, 6")
        e("s_cbranch_scc1 L_NOWARM")
        srd(52, 24, 8*448*2)
        srd(56, 16, 3584)
        e(f"v_lshlrev_b32 v{VT3}, 21, v1")
        e("s_mov_b64 exec, 3")
        e(f"buffer_load_dword v170, v{VT3}, s[32:35], s{S_PB} offen")
        e(f"buffer_load_dword v171, v{VT3}, s[36:39], s{S_PB} offen")
        e("s_mov_b64 exec, 1")
        e(f"buffer_load_dword v172, v{VT3}, s[52:55], 0 offen")
        e(f"buffer_load_dword v173, v{VT3}, s[56:59], 0 offen")
        srd(52, 18, 3584)
        srd(56, 20, 3584)
        e(f"buffer_load_dword v174, v{VT3}, s[52:55], 0 offen")
        e(f"buffer_load_dword v175, v{VT3}, s[56:59], 0 offen")
        srd(52, 22, 2)
        srd(56, 12, 4096*448*2)
        e(f"buffer_load_ushort v176, v{VT3}, s[52:55], 0 offen")
        e(f"s_mul_i32 s71, s{S_HKV}, 458752")
        e(f"buffer_load_dword v177, v{VT3}, s[56:59], s71 offen")
        e("s_mov_b64 exec, -1")
        e("s_waitcnt vmcnt(16)")
        e("s_branch L_LN")
        lbl("L_NOWARM")
    e("s_waitcnt vmcnt(8)")
    e("s_branch L_LN")
    lbl("L_NONCE")
    e("s_or_b32 s74, s74, 1")
    e("v_mov_b32 v160, s74")
    e("v_mov_b32 v161, s75")
    e("v_mov_b32 v162, 0")
    e("v_mov_b32 v163, 0")
    e("v_mov_b32 v164, 0")
    e("s_cmp_ge_u32 s2, 8")
    e("s_cbranch_scc1 L_NOCAS")
    e("s_mov_b64 exec, 1")
    e("buffer_atomic_cmpswap_x2 v[160:163], v164, s[48:51], 0 offen")
    e("s_mov_b64 exec, -1")
    e("s_waitcnt vmcnt(1)")
    e("s_branch L_LN")
    lbl("L_NOCAS")
    e("s_waitcnt vmcnt(0)")
    lbl("L_LN")
    stamp()
    for x in xs:
        e(f"v_lshlrev_b32 v{x}, 16, v{x}")
    layernorm_wave(xs, 448, 2)
    e(f"v_lshlrev_b32 v{VT3}, 1, v1")
    e(f"s_add_u32 s69, s69, {L_XN}")
    e(f"v_add_u32 v{VT3}, s69, v{VT3}")
    for i, x in enumerate(xs):
        e(f"v_lshrrev_b32 v{x}, 16, v{x}")
        e(f"ds_write_b16 v{VT3}, v{x} offset:{i*128}")
    e(f"v_and_b32 v{VT3}, 7, v1")
    e(f"v_mul_u32_u24 v{VT3}, 896, v{VT3}")
    e(f"v_lshrrev_b32 v{VT4}, 3, v1")
    e(f"v_lshl_add_u32 v{VT3}, v{VT4}, 4, v{VT3}")
    e(f"s_lshl_b32 s69, s{S_WAVE}, 7")
    e(f"s_add_u32 s69, s69, {L_XN}")
    e(f"v_add_u32 v{VT3}, s69, v{VT3}")
    e("s_waitcnt lgkmcnt(0)")
    e("s_barrier")
    e(f"s_cmp_eq_u32 s{S_WAVE}, 7")
    e("s_cbranch_scc1 L_NONCE2")
    e(f"ds_read_b128 v[2:5], v{VT3}")
    e("s_waitcnt vmcnt(0)")
    for p in range(4):
        e(f"v_perm_b32 v{168+p}, v{161+2*p}, v{160+2*p}, s{S_SLO}")
        e(f"v_perm_b32 v{172+p}, v{161+2*p}, v{160+2*p}, s{S_SHI}")
    e(f"v_lshrrev_b32 v{VT3}, 4, v1")
    e(f"v_lshlrev_b32 v{VT3}, 8, v{VT3}")
    e(f"v_and_b32 v{VT4}, 7, v1")
    e(f"v_lshl_add_u32 v{VT3}, v{VT4}, 3, v{VT3}")
    e(f"s_lshl_b32 s69, s{S_WAVE}, 10")
    e(f"s_add_u32 s69, s69, {L_CMB}")
    e(f"v_add_u32 v{VT3}, s69, v{VT3}")
    e(f"v_lshrrev_b32 v{VT4}, 5, v1")
    e(f"v_bfe_u32 v6, v1, 3, 1")
    e(f"v_cmp_eq_u32 vcc, v{VT4}, v6")
    e("s_waitcnt lgkmcnt(0)")
    e("v_mfma_f32_16x16x32_bf16 v[176:179], v[2:5], v[168:171], 0")
    e("v_mfma_f32_16x16x32_bf16 v[180:183], v[2:5], v[172:175], 0")
    e("s_and_saveexec_b64 s[72:73], vcc")
    e("s_nop 7")
    for r in range(4):
        e(f"v_mov_b32 v6, v{176+r}")
        e(f"v_mov_b32 v7, v{180+r}")
        e(f"ds_write_b64 v{VT3}, v[6:7] offset:{r*64}")
    e("s_mov_b64 exec, s[72:73]")
    e("s_branch L_QRED")
    lbl("L_NONCE2")
    e("buffer_load_dwordx2 v[2:3], v164, s[48:51], 0 offen sc1")
    e("s_waitcnt vmcnt(0)")
    e("v_readfirstlane_b32 s70, v2")
    e("v_readfirstlane_b32 s71, v3")
    e("s_cmp_eq_u64 s[70:71], 0")
    e("s_cbranch_scc1 L_NONCE2")
    e(f"v_mov_b32 v4, {L_NON}")
    e("ds_write_b64 v4, v[2:3]")
    lbl("L_QRED")
    e("s_waitcnt lgkmcnt(0)")
    e("s_barrier")
    stamp()
    e(f"v_mov_b32 v4, {L_NON}")
    e("ds_read_b64 v[2:3], v4")
    e("s_waitcnt lgkmcnt(0)")
    e(f"v_readfirstlane_b32 s{S_N}, v2")
    e(f"v_readfirstlane_b32 s{S_N+1}, v3")
    e(f"s_cmp_lg_u32 s{S_WAVE}, 0")
    e("s_cbranch_scc1 L_JOIN")
    e(f"v_lshlrev_b32 v{VT3}, 3, v1")
    e(f"v_add_u32 v{VT3}, {L_CMB}, v{VT3}")
    for i in range(14):
        e(f"ds_read_b64 v[{32+2*i}:{33+2*i}], v{VT3} offset:{i*512}")
    srd(40, 28, 64*128*16, WS_QG)
    e(f"v_lshrrev_b32 v{VT3}, 3, v1")
    e(f"v_lshlrev_b32 v{VT3}, 14, v{VT3}")
    e(f"v_and_b32 v{VT4}, 7, v1")
    e(f"v_lshl_add_u32 v{VT3}, v{VT4}, 3, v{VT3}")
    e(f"s_lshl_b32 s69, s{S_HKV}, 11")
    e("s_lshl_b32 s70, s77, 6")
    e("s_add_u32 s69, s69, s70")
    e(f"v_mov_b32 v14, s{S_N}")
    e(f"v_mov_b32 v15, s{S_N+1}")
    e(f"s_cmp_lg_u32 s{S_SPLIT}, 0")
    e("s_cbranch_scc1 L_NOINIT")
    srd(44, 28, 64*256, WS_CNT)
    e(f"s_lshl_b32 s70, s{S_PAIR}, 8")
    e("v_mov_b32 v12, 32")
    e("v_mov_b32 v13, 0")
    e("s_mov_b64 exec, 1")
    e("buffer_store_dword v12, v13, s[44:47], s70 offen sc1")
    e("s_mov_b64 exec, -1")
    e("s_waitcnt vmcnt(0)")
    lbl("L_NOINIT")
    e("s_waitcnt lgkmcnt(0)")
    for i in range(1, 14):
        e(f"v_add_f32 v32, v32, v{32+2*i}")
        e(f"v_add_f32 v33, v33, v{33+2*i}")
    e("v_cvt_pk_bf16_f32 v12, v32, v33")
    e("s_nop 1")
    e(f"v_mov_b32_dpp v13, v12 quad_perm:[1,0,3,2] {DPPM}")
    e("s_mov_b32 exec_lo, 0x55555555")
    e("s_mov_b32 exec_hi, 0x55555555")
    e(f"buffer_store_dwordx4 v[12:15], v{VT3}, s[40:43], s69 offen sc1")
    e("s_mov_b64 exec, -1")
    stamp()
    e(f"v_lshlrev_b32 v{VT3}, 4, v1")
    e(f"s_lshl_b32 s69, s{S_PAIR}, 11")
    def iss():
        e(f"buffer_load_dwordx4 v[32:35], v{VT3}, s[40:43], s69 offen sc1")
        e(f"buffer_load_dwordx4 v[36:39], v{VT3}, s[40:43], s69 offen offset:1024 sc1")
    poll("L_H0", iss, [32, 36], sleep=2)
    stamp()
    e(f"v_lshlrev_b32 v{VT3}, 3, v1")
    e(f"v_add_u32 v{VT3}, {L_QL}, v{VT3}")
    e(f"ds_write_b64 v{VT3}, v[32:33]")
    e(f"ds_write_b64 v{VT3}, v[36:37] offset:512")
    e("s_waitcnt lgkmcnt(0)")
    lbl("L_JOIN")
    e("s_barrier")
    stamp()
    e(f"v_and_b32 v{VT1}, 15, v1")
    e(f"v_lshrrev_b32 v{VT2}, 4, v1")
    e(f"v_and_b32 v{VT3}, 7, v{VT1}")
    e(f"v_lshrrev_b32 v{VT4}, 2, v{VT3}")
    e(f"v_lshlrev_b32 v{VT4}, 9, v{VT4}")
    e(f"v_lshl_add_u32 v{VT4}, v{VT2}, 6, v{VT4}")
    e(f"v_and_b32 v{VT3}, 3, v{VT1}")
    e(f"v_lshl_add_u32 v{VT4}, v{VT3}, 4, v{VT4}")
    e(f"v_add_u32 v{VT4}, {L_QL}, v{VT4}")
    e(f"ds_read_b128 v[{QB}:{QB+3}], v{VT4}")
    e(f"ds_read_b128 v[{QB+4}:{QB+7}], v{VT4} offset:256")
    srd(8, 28, 64*256, WS_CNT)
    e(f"s_lshl_b32 s{S_CO}, s{S_PAIR}, 8")
    loads_K()
    e(f"v_mov_b32 v{VAT}, 1")
    e("s_mov_b64 exec, 1")
    e(f"buffer_atomic_add v{VAT}, v{VZ}, s[8:11], s{S_CO} offen sc0")
    e("s_mov_b64 exec, -1")
    loads_V()
    e(f"s_cmp_lt_u32 s{S_WAVE}, 4")
    e("s_cbranch_scc1 L_NODMA")
    srd(40, 12, 4096*448*2)
    e(f"v_mul_u32_u24 v{VT3}, 4682, v1")
    e(f"v_lshrrev_b32 v{VT3}, 16, v{VT3}")
    e(f"v_mul_u32_u24 v{VT2}, 672, v{VT3}")
    e(f"v_lshl_add_u32 v{VT2}, v1, 4, v{VT2}")
    e(f"s_sub_u32 s69, s{S_WAVE}, 4")
    e("s_mul_i32 s70, s69, 28672")
    e(f"s_lshl_b32 s71, s{S_HKV}, 2")
    e("s_add_u32 s71, s71, s69")
    e("s_mul_i32 s71, s71, 114688")
    e(f"s_mul_i32 s72, s{S_SPLIT}, 224")
    e("s_add_u32 s71, s71, s72")
    e("s_mov_b32 s72, 0")
    e("s_mov_b32 exec_hi, 0x00ffffff")
    lbl("L_WODMA")
    e("s_mov_b32 m0, s70")
    e("s_add_u32 s70, s70, 896")
    e(f"buffer_load_dwordx4 v{VT2}, s[40:43], s71 offen lds")
    e("s_add_u32 s71, s71, 3584")
    e("s_add_u32 s72, s72, 1")
    e("s_cmp_lt_u32 s72, 32")
    e("s_cbranch_scc1 L_WODMA")
    e("s_mov_b64 exec, -1")
    lbl("L_NODMA")
    for r in range(64):
        e(f"v_mov_b32 v{OB+r}, 0")
    e(f"v_mov_b32 v{VM}, 0xff7fffff")
    e(f"v_mov_b32 v{VL}, 0")
    e(f"v_mov_b32 v{VMC}, 0")
    e(f"v_cmp_gt_u32 vcc, 8, v{VT1}")
    e("s_waitcnt lgkmcnt(0)")
    e("s_nop 0")
    for r in range(8):
        e(f"v_cndmask_b32 v{QB+r}, 0, v{QB+r}, vcc")
    e(f"s_mov_b32 s{S_CNT}, 0")
    srd(40, 16, 3584)
    srd(44, 18, 3584)
    srd(48, 20, 3584)
    srd(52, 22, 2)
    srd(56, 4, 8*448*2)
    lbl("L_LOOP")
    e("s_waitcnt vmcnt(17)")
    for jj in range(2):
        for i in range(8):
            d = TB + i*4
            kk = KB + (i*2+jj)*4
            c = "0" if jj == 0 else f"v[{d}:{d+3}]"
            e(f"v_mfma_f32_16x16x32_bf16 v[{d}:{d+3}], v[{kk}:{kk+3}], v[{QB+jj*4}:{QB+jj*4+3}], {c}")
    e("s_waitcnt vmcnt(16)")
    e(f"v_readfirstlane_b32 s69, v{VAT}")
    e("s_cmp_ge_u32 s69, 256")
    e("s_cbranch_scc1 L_LASTK")
    e("s_lshl_b32 s69, s69, 14")
    e(f"s_add_u32 s{S_BASE}, s{S_PB}, s69")
    loads_K()
    e(f"v_mov_b32 v{VAT}, 1")
    e("s_mov_b64 exec, 1")
    e(f"buffer_atomic_add v{VAT}, v{VZ}, s[8:11], s{S_CO} offen sc0")
    e("s_mov_b64 exec, -1")
    e("s_branch L_AFTK")
    lbl("L_LASTK")
    e(f"s_mov_b32 s{S_CNT}, 1")
    e(f"v_mul_u32_u24 v{VT1}, 56, v1")
    for base, sr in [(32, 40), (46, 44), (60, 48)]:
        for i in range(7):
            e(f"buffer_load_dwordx2 v[{base+2*i}:{base+2*i+1}], v{VT1}, s[{sr}:{sr+3}], 0 offen offset:{i*8}")
    e(f"v_lshlrev_b32 v{VT1}, 1, v0")
    e(f"s_mul_i32 s69, s{S_B}, 896")
    e(f"buffer_load_ushort v74, v{VT1}, s[56:59], s69 offen")
    e(f"v_mov_b32 v{VT1}, 0")
    e(f"buffer_load_ushort v75, v{VT1}, s[52:55], 0 offen")
    lbl("L_AFTK")
    for i in range(8):
        d = TB + i*4
        e(f"v_mov_b32_dpp v{SB+i}, v{d} quad_perm:[0,0,0,0] {DPPM}")
        e(f"v_add_f32_dpp v{SB+i}, v{d+1}, v{SB+i} quad_perm:[1,1,1,1] {DPPM}")
        e(f"v_add_f32_dpp v{SB+i}, v{d+2}, v{SB+i} quad_perm:[2,2,2,2] {DPPM}")
        e(f"v_add_f32_dpp v{SB+i}, v{d+3}, v{SB+i} quad_perm:[3,3,3,3] {DPPM}")
    for i in range(0, 8, 2):
        e(f"v_cvt_pk_bf16_f32 v{VT1}, v{SB+i}, v{SB+i+1}")
        e(f"v_lshlrev_b32 v{SB+i}, 16, v{VT1}")
        e(f"v_and_b32 v{SB+i+1}, 0xffff0000, v{VT1}")
    e(f"v_max3_f32 v{VT1}, v{SB}, v{SB+1}, v{SB+2}")
    e(f"v_max3_f32 v{VT1}, v{VT1}, v{SB+3}, v{SB+4}")
    e(f"v_max3_f32 v{VT1}, v{VT1}, v{SB+5}, v{SB+6}")
    e(f"v_max_f32 v{VT1}, v{VT1}, v{SB+7}")
    e(f"v_cmp_gt_f32 vcc, v{VT1}, v{VM}")
    e("s_cbranch_vccz L_FAST")
    for sw in ["v_permlane16_swap_b32", "v_permlane32_swap_b32"]:
        e(f"v_mov_b32 v{VT2}, v{VT1}")
        e(f"v_mov_b32 v{VT3}, v{VT1}")
        e("s_nop 1")
        e(f"{sw} v{VT2}, v{VT3}")
        e("s_nop 1")
        e(f"v_max_f32 v{VT1}, v{VT2}, v{VT3}")
    e(f"v_max_f32 v{VT1}, v{VT1}, v{VM}")
    e(f"v_sub_f32 v{VT2}, v{VM}, v{VT1}")
    e(f"v_mul_f32 v{VT2}, s{S_C}, v{VT2}")
    e(f"v_exp_f32 v{VT2}, v{VT2}")
    e(f"v_mov_b32 v{VM}, v{VT1}")
    e(f"v_mul_f32 v{VMC}, s{S_C}, v{VT1}")
    e(f"v_mul_f32 v{VL}, v{VL}, v{VT2}")
    e(f"ds_bpermute_b32 v{VT3}, v{VBP}, v{VT2}")
    e("s_waitcnt lgkmcnt(0)")
    for r in range(64):
        e(f"v_mul_f32 v{OB+r}, v{OB+r}, v{VT3}")
    lbl("L_FAST")
    for i in range(8):
        e(f"v_fma_f32 v{SB+i}, v{SB+i}, s{S_C}, -v{VMC}")
    for i in range(8):
        e(f"v_exp_f32 v{SB+i}, v{SB+i}")
    e("s_nop 0")
    for i in range(0, 8, 2):
        e(f"v_cvt_pk_bf16_f32 v{PB+i//2}, v{SB+i}, v{SB+i+1}")
    e(f"v_add_f32 v{VT1}, v{SB}, v{SB+1}")
    e(f"v_add_f32 v{VT2}, v{SB+2}, v{SB+3}")
    e(f"v_add_f32 v{VT3}, v{SB+4}, v{SB+5}")
    e(f"v_add_f32 v{VT1}, v{VT1}, v{VT2}")
    e(f"v_add_f32 v{VT2}, v{SB+6}, v{SB+7}")
    e(f"v_add_f32 v{VT3}, v{VT3}, v{VT2}")
    e(f"v_add_f32 v{VT1}, v{VT1}, v{VT3}")
    e(f"v_add_f32 v{VL}, v{VL}, v{VT1}")
    e(f"s_cmp_eq_u32 s{S_CNT}, 1")
    e("s_cbranch_scc0 L_W16")
    e("s_waitcnt vmcnt(0)")
    lbl("L_W16")
    e("s_waitcnt vmcnt(17)")
    for h in range(2):
        for w in range(4):
            for p in range(4):
                a = VB + (h*8+2*p)*4 + w
                b = VB + (h*8+2*p+1)*4 + w
                e(f"v_perm_b32 v{TB+(2*w)*4+p}, v{b}, v{a}, s{S_SLO}")
                e(f"v_perm_b32 v{TB+(2*w+1)*4+p}, v{b}, v{a}, s{S_SHI}")
        if h == 1:
            e(f"s_cmp_eq_u32 s{S_CNT}, 1")
            e("s_cbranch_scc1 L_SKIPV")
            loads_V()
            lbl("L_SKIPV")
        e("s_nop 1")
        for j in range(8):
            o = OB + (h*8+j)*4
            e(f"v_mfma_f32_16x16x32_bf16 v[{o}:{o+3}], v[{PB}:{PB+3}], v[{TB+j*4}:{TB+j*4+3}], v[{o}:{o+3}]")
    e(f"s_cmp_eq_u32 s{S_CNT}, 0")
    e("s_cbranch_scc1 L_LOOP")
    stamp()
    if STAMP:
        e("s_waitcnt lgkmcnt(0)")
        srd(56, 28, 65536, 0x210000)
        e("s_lshl_b32 s69, s2, 3")
        e(f"s_add_u32 s69, s69, s{S_WAVE}")
        e("s_lshl_b32 s69, s69, 2")
        e(f"v_mov_b32 v{VT1}, s{80+2*(nstamp[0]-1)}")
        e(f"v_mov_b32 v{VT2}, 0")
        e(f"buffer_store_dword v{VT1}, v{VT2}, s[56:59], s69 offen")
    for sw in ["v_permlane16_swap_b32", "v_permlane32_swap_b32"]:
        e(f"v_mov_b32 v{VT2}, v{VL}")
        e(f"v_mov_b32 v{VT3}, v{VL}")
        e("s_nop 1")
        e(f"{sw} v{VT2}, v{VT3}")
        e("s_nop 1")
        e(f"v_add_f32 v{VL}, v{VT2}, v{VT3}")
    e(f"v_and_b32 v{VT1}, 15, v1")
    e(f"v_lshrrev_b32 v{VT2}, 4, v1")
    e(f"v_lshlrev_b32 v{VT3}, 10, v{VT2}")
    e(f"v_lshl_add_u32 v{VT3}, v{VT1}, 5, v{VT3}")
    e(f"s_lshl_b32 s69, s{S_WAVE}, 11")
    e(f"s_add_u32 s69, s69, {L_CMB}")
    e(f"v_add_u32 v{VT3}, s69, v{VT3}")
    e("v_cmp_gt_u32 vcc, 32, v1")
    e("s_and_saveexec_b64 s[72:73], vcc")
    for h in range(2):
        for j in range(8):
            e(f"ds_write_b32 v{VT3}, v{OB+(h*8+j)*4} offset:{(h*128+j)*4}")
    e("s_mov_b64 exec, s[72:73]")
    e(f"v_lshlrev_b32 v{VT3}, 1, v1")
    e(f"s_lshl_b32 s69, s{S_WAVE}, 4")
    e(f"s_add_u32 s69, s69, {L_ML}")
    e(f"v_add_u32 v{VT3}, s69, v{VT3}")
    e(f"v_and_b32 v{VT1}, 0xfb, v1")
    e(f"v_cmp_eq_u32 vcc, 0, v{VT1}")
    e("s_and_saveexec_b64 s[72:73], vcc")
    e(f"ds_write_b64 v{VT3}, v[{VM}:{VM+1}]")
    e("s_mov_b64 exec, s[72:73]")
    srd(40, 28, 256*PG_STRIDE, WS_PG)
    srd(52, 28, 64*3584, WS_OG)
    e("v_lshrrev_b32 v2, 8, v0")
    e("v_lshlrev_b32 v3, 3, v2")
    e(f"v_add_u32 v3, {L_ML}, v3")
    e("v_lshlrev_b32 v4, 2, v0")
    e(f"v_add_u32 v5, {L_CMB}, v4")
    e("v_and_b32 v9, 0xfffffffe, v0")
    e("v_lshlrev_b32 v9, 3, v9")
    e(f"v_mov_b32 v14, s{S_N}")
    e(f"v_mov_b32 v15, s{S_N+1}")
    e(f"v_mov_b32 v18, s{S_N}")
    e(f"v_mov_b32 v19, s{S_N+1}")
    e("s_waitcnt lgkmcnt(0)")
    e("s_barrier")
    for w in range(8):
        e(f"ds_read_b64 v[{96+2*w}:{97+2*w}], v3 offset:{w*16}")
    for w in range(8):
        e(f"ds_read_b32 v{112+w}, v5 offset:{w*2048}")
    e(f"s_lshl_b32 s69, s{S_PAIR}, 2")
    e(f"s_add_u32 s69, s69, s{S_SPLIT}")
    e(f"s_mul_i32 s69, s69, {PG_STRIDE}")
    e("v_lshlrev_b32 v8, 4, v2")
    e("v_add_u32 v8, 4096, v8")
    e("s_waitcnt lgkmcnt(0)")
    e("v_max3_f32 v16, v96, v98, v100")
    e("v_max3_f32 v16, v16, v102, v104")
    e("v_max3_f32 v16, v16, v106, v108")
    e("v_max_f32 v16, v16, v110")
    for w in range(8):
        e(f"v_sub_f32 v{96+2*w}, v{96+2*w}, v16")
        e(f"v_mul_f32 v{96+2*w}, s{S_C}, v{96+2*w}")
        e(f"v_exp_f32 v{96+2*w}, v{96+2*w}")
    e("s_nop 0")
    e("v_mul_f32 v17, v96, v97")
    e("v_mul_f32 v12, v96, v112")
    for w in range(1, 8):
        e(f"v_fmac_f32 v17, v{96+2*w}, v{97+2*w}")
        e(f"v_fmac_f32 v12, v{96+2*w}, v{112+w}")
    e("s_nop 1")
    e(f"v_mov_b32_dpp v13, v12 quad_perm:[1,0,3,2] {DPPM}")
    e("s_mov_b32 exec_lo, 0x55555555")
    e("s_mov_b32 exec_hi, 0x55555555")
    e("buffer_store_dwordx4 v[12:15], v9, s[40:43], s69 offen sc1")
    e("s_mov_b64 exec, -1")
    e("v_and_b32 v6, 255, v0")
    e("v_cmp_eq_u32 vcc, 0, v6")
    e("s_and_saveexec_b64 s[72:73], vcc")
    e("buffer_store_dwordx4 v[16:19], v8, s[40:43], s69 offen sc1")
    e("s_mov_b64 exec, s[72:73]")
    e("v_mul_u32_u24 v12, 4682, v0")
    e("v_lshrrev_b32 v12, 16, v12")
    e("v_mul_u32_u24 v13, 14, v12")
    e("v_sub_u32 v13, v0, v13")
    e("v_mul_u32_u24 v20, 3584, v12")
    e("v_lshl_add_u32 v20, v13, 4, v20")
    e("v_lshlrev_b32 v21, 7, v12")
    e(f"v_add_u32 v21, {L_OL}, v21")
    e("v_mul_u32_u24 v22, 448, v12")
    e("v_lshl_add_u32 v22, v13, 5, v22")
    e(f"v_add_u32 v22, {L_CMB}, v22")
    e("v_lshlrev_b32 v6, 3, v0")
    e(f"v_add_u32 v6, {L_OL}, v6")
    e(f"s_mul_i32 s69, s{S_PAIR}, {4*PG_STRIDE}")
    e(f"s_cmp_lg_u32 s{S_WAVE}, 0")
    e("s_cbranch_scc1 L_H1_DONE")
    e("v_lshrrev_b32 v10, 1, v1")
    e(f"v_mul_u32_u24 v10, {PG_STRIDE}, v10")
    e("v_and_b32 v11, 1, v1")
    e("v_lshl_add_u32 v10, v11, 4, v10")
    e("v_add_u32 v10, 4096, v10")
    e("v_lshlrev_b32 v11, 3, v1")
    e(f"v_add_u32 v11, {L_ML2}, v11")
    e("s_mov_b64 exec, 0xff")
    poll("L_H1", lambda: e("buffer_load_dwordx4 v[96:99], v10, s[40:43], s69 offen sc1"), [96], sleep=6)
    e("ds_write_b64 v11, v[96:97]")
    e("s_mov_b64 exec, -1")
    e("s_waitcnt lgkmcnt(0)")
    lbl("L_H1_DONE")
    e("s_barrier")
    stamp()
    e("v_lshlrev_b32 v3, 3, v2")
    e(f"v_add_u32 v3, {L_ML2}, v3")
    for s in range(4):
        e(f"ds_read_b64 v[{112+2*s}:{113+2*s}], v3 offset:{s*16}")
    def iss2():
        e("s_mov_b32 s70, s69")
        for s in range(4):
            e(f"buffer_load_dwordx4 v[{96+4*s}:{99+4*s}], v9, s[40:43], s70 offen sc1")
            e(f"s_add_u32 s70, s70, {PG_STRIDE}")
    poll("L_T2", iss2, [96, 100, 104, 108], sleep=1)
    e("v_and_b32 v7, 1, v0")
    e("v_cmp_eq_u32 vcc, 1, v7")
    e("s_waitcnt lgkmcnt(0)")
    e("s_nop 0")
    for s in range(4):
        e(f"v_cndmask_b32 v{96+4*s}, v{96+4*s}, v{97+4*s}, vcc")
    e("v_max3_f32 v10, v112, v114, v116")
    e("v_max_f32 v10, v10, v118")
    for s in range(4):
        e(f"v_sub_f32 v{112+2*s}, v{112+2*s}, v10")
        e(f"v_mul_f32 v{112+2*s}, s{S_C}, v{112+2*s}")
        e(f"v_exp_f32 v{112+2*s}, v{112+2*s}")
    e("s_nop 0")
    e("v_mul_f32 v11, v112, v113")
    e("v_mul_f32 v7, v112, v96")
    for s in range(1, 4):
        e(f"v_fmac_f32 v11, v{112+2*s}, v{113+2*s}")
        e(f"v_fmac_f32 v7, v{112+2*s}, v{96+4*s}")
    e("v_rcp_f32 v10, v11")
    e("s_nop 0")
    e("v_mul_f32 v8, v7, v10")
    e("v_fma_f32 v7, -v8, v11, v7")
    e("v_fma_f32 v8, v7, v10, v8")
    e("v_cvt_pk_bf16_f32 v8, v8, v8")
    e("v_lshlrev_b32 v11, 16, v8")
    e("v_and_b32 v10, 0xffff, v8")
    e("ds_write_b64 v6, v[10:11]")
    e("s_waitcnt lgkmcnt(0)")
    e("s_barrier")
    e(f"s_cmp_eq_u32 s{S_WAVE}, 7")
    e("s_cbranch_scc1 L_T3SKIP")
    for i in range(16):
        e(f"ds_read_b128 v[{96+4*i}:{99+4*i}], v20 offset:{i*224}")
    for i in range(8):
        e(f"ds_read_b128 v[{160+4*i}:{163+4*i}], v21 offset:{i*16}")
    for j in range(8):
        e(f"v_mov_b32 v{192+j}, 0")
    e("s_waitcnt lgkmcnt(0)")
    for i in range(16):
        lo, hi = 160 + 2*i, 161 + 2*i
        for w in range(4):
            e(f"v_dot2_f32_bf16 v{192+2*w}, v{96+4*i+w}, v{lo}, v{192+2*w}")
            e(f"v_dot2_f32_bf16 v{193+2*w}, v{96+4*i+w}, v{hi}, v{193+2*w}")
    e("s_nop 2")
    e("ds_write_b128 v22, v[192:195]")
    e("ds_write_b128 v22, v[196:199] offset:16")
    lbl("L_T3SKIP")
    e("s_waitcnt lgkmcnt(0)")
    e("s_barrier")
    e(f"s_mul_i32 s69, s{S_B}, {8*3584}")
    e(f"s_cmp_ge_u32 s{S_WAVE}, 2")
    e("s_cbranch_scc1 L_T3B")
    for ks in range(32):
        e(f"ds_read_b32 v{96+ks}, v5 offset:{ks*448}")
    e(f"s_mul_i32 s70, s{S_HKV}, 3584")
    e(f"s_mul_i32 s71, s{S_SPLIT}, 896")
    e("s_add_u32 s70, s70, s71")
    e("s_add_u32 s70, s70, s69")
    e("v_cmp_gt_u32 vcc, 112, v0")
    e("s_and_b32 vcc_lo, vcc_lo, 0x55555555")
    e("s_and_b32 vcc_hi, vcc_hi, 0x55555555")
    e("s_waitcnt lgkmcnt(0)")
    for st in [16, 8, 4, 2]:
        for i in range(st):
            e(f"v_add_f32 v{96+i}, v{96+i}, v{96+st+i}")
    e("v_add_f32 v12, v96, v97")
    e("s_nop 1")
    e(f"v_mov_b32_dpp v13, v12 quad_perm:[1,0,3,2] {DPPM}")
    e("s_and_saveexec_b64 s[72:73], vcc")
    e("buffer_store_dwordx4 v[12:15], v9, s[52:55], s70 offen sc1")
    e("s_mov_b64 exec, s[72:73]")
    lbl("L_T3B")
    e(f"s_cmp_lg_u32 s{S_WAVE}, 0")
    e("s_cbranch_scc1 L_H2_DONE")
    e("v_mul_u32_u24 v10, 896, v1")
    e("v_add_u32 v10, 880, v10")
    e("s_mov_b32 exec_hi, 0")
    poll("L_H2", lambda: e("buffer_load_dwordx4 v[96:99], v10, s[52:55], s69 offen sc1"), [96], sleep=6)
    e("s_mov_b64 exec, -1")
    lbl("L_H2_DONE")
    e("s_barrier")
    stamp()
    e(f"s_cmp_eq_u32 s{S_WAVE}, 7")
    e("s_cbranch_scc1 L_T4SKIP")
    for (src, dst) in [(32, 128), (46, 156), (60, 184)]:
        for i in range(14):
            e(f"v_lshlrev_b32 v{dst+2*i}, 16, v{src+i}")
            e(f"v_and_b32 v{dst+2*i+1}, 0xffff0000, v{src+i}")
    def iss4():
        e("s_mov_b32 s70, s69")
        for p in range(8):
            e(f"buffer_load_dwordx4 v[{96+4*p}:{99+4*p}], v9, s[52:55], s70 offen sc1")
            e("s_add_u32 s70, s70, 3584")
    poll("L_T4", iss4, [96+4*p for p in range(8)], sleep=1)
    e("v_and_b32 v7, 1, v0")
    e("v_cmp_eq_u32 vcc, 1, v7")
    e(f"v_add_u32 v5, {L_H}, v4")
    e("s_nop 0")
    for p in range(8):
        e(f"v_cndmask_b32 v{96+4*p}, v{96+4*p}, v{97+4*p}, vcc")
    e("v_add_f32 v96, v96, v100")
    e("v_add_f32 v104, v104, v108")
    e("v_add_f32 v112, v112, v116")
    e("v_add_f32 v120, v120, v124")
    e("v_add_f32 v96, v96, v104")
    e("v_add_f32 v112, v112, v120")
    e("v_add_f32 v96, v96, v112")
    round_bf16(96, 97)
    e("v_lshlrev_b32 v74, 16, v74")
    e("v_add_f32 v96, v96, v74")
    round_bf16(96, 97)
    e("ds_write_b32 v5, v96")
    e("s_waitcnt lgkmcnt(0)")
    lbl("L_T4SKIP")
    e("s_barrier")
    e(f"s_cmp_eq_u32 s{S_WAVE}, 7")
    e("s_cbranch_scc1 L_END")
    e("v_lshlrev_b32 v6, 2, v1")
    e(f"v_add_u32 v6, {L_H}, v6")
    xs = list(range(10, 17))
    for i in range(7):
        e(f"ds_read_b32 v{xs[i]}, v6 offset:{i*256}")
    e(f"s_lshl_b32 s69, s{S_SPLIT}, 3")
    e(f"s_add_u32 s69, s69, s{S_HKV}")
    e("s_mul_i32 s69, s69, 14")
    e(f"s_lshl_b32 s70, s{S_WAVE}, 1")
    e("s_add_u32 s69, s69, s70")
    e("s_lshl_b32 s70, s69, 2")
    e(f"s_add_u32 s70, s70, {L_H}")
    e("v_mov_b32 v7, s70")
    e("ds_read_b64 v[34:35], v7")
    e("s_waitcnt lgkmcnt(0)")
    layernorm_wave(xs, 448, 2)
    layernorm_wave(xs, 448, 2)
    e("s_and_b32 s70, s69, 63")
    e("s_lshr_b32 s71, s69, 6")
    e("s_add_u32 s74, s69, 1")
    e("s_and_b32 s75, s74, 63")
    e("s_lshr_b32 s76, s74, 6")
    e("v_mov_b32 v36, v10")
    e("v_mov_b32 v37, v10")
    for i in range(1, 7):
        e(f"s_cmp_eq_u32 s71, {i}")
        e("s_cselect_b64 s[72:73], -1, 0")
        e(f"v_cndmask_b32 v36, v36, v{10+i}, s[72:73]")
        e(f"s_cmp_eq_u32 s76, {i}")
        e("s_cselect_b64 s[72:73], -1, 0")
        e(f"v_cndmask_b32 v37, v37, v{10+i}, s[72:73]")
    e("s_nop 1")
    e("v_readlane_b32 s40, v36, s70")
    e("v_readlane_b32 s41, v37, s75")
    k1 = -2.0*0.7978845608028654*1.4426950408889634
    k2 = k1*0.044715
    e(f"s_mov_b32 s42, {hexf(k1)}")
    e(f"s_mov_b32 s43, {hexf(k2)}")
    e("v_mov_b32 v40, 0")
    e("v_mov_b32 v41, 0")
    e("v_mov_b32 v42, s42")
    stamp()
    for i in range(28):
        for o in range(2):
            u, a = 44+o*4, 45+o*4
            e(f"v_fma_f32 v{u}, s{40+o}, v{128+i}, v{156+i}")
            e(f"v_mul_f32 v{a}, v{u}, v{u}")
            e(f"v_fma_f32 v{a}, s43, v{a}, v42")
            e(f"v_mul_f32 v{a}, v{a}, v{u}")
        for o in range(2):
            e(f"v_exp_f32 v{45+o*4}, v{45+o*4}")
        for o in range(2):
            e(f"v_add_f32 v{45+o*4}, 1.0, v{45+o*4}")
        for o in range(2):
            e(f"v_rcp_f32 v{45+o*4}, v{45+o*4}")
        for o in range(2):
            e(f"v_mul_f32 v{44+o*4}, v{44+o*4}, v{184+i}")
        for o in range(2):
            e(f"v_fmac_f32 v{40+o}, v{44+o*4}, v{45+o*4}")
    wave_allreduce(40, 44, 45)
    wave_allreduce(41, 44, 45)
    e("v_lshlrev_b32 v75, 16, v75")
    for o in range(2):
        round_bf16(40+o, 44)
        e(f"v_add_f32 v{40+o}, v{40+o}, v75")
        round_bf16(40+o, 44)
        e(f"v_add_f32 v{40+o}, v{40+o}, v{34+o}")
    e("v_cvt_pk_bf16_f32 v40, v40, v41")
    srd(56, 24, 8*448*2)
    e(f"s_mul_i32 s70, s{S_B}, 448")
    e("s_add_u32 s70, s70, s69")
    e("s_lshl_b32 s70, s70, 1")
    e("v_mov_b32 v7, 0")
    e("v_cmp_eq_u32 vcc, 0, v1")
    e("s_and_saveexec_b64 s[72:73], vcc")
    e("buffer_store_dword v40, v7, s[56:59], s70 offen")
    if STAMP:
        stamp()
        e("s_waitcnt lgkmcnt(0) vmcnt(0)")
        e(f"s_cmp_lg_u32 s{S_WAVE}, 0")
        e("s_cbranch_scc1 L_END")
        srd(56, 28, 65536, 0x200000)
        e("s_lshl_b32 s69, s2, 6")
        for i in range(nstamp[0]):
            e(f"s_sub_u32 s70, s{80+2*i}, s80")
            e("v_mov_b32 v2, s70")
            e(f"buffer_store_dword v2, v7, s[56:59], s69 offen offset:{i*4}")
        e("v_mov_b32 v2, s80")
        e(f"buffer_store_dword v2, v7, s[56:59], s69 offen offset:60")
    lbl("L_END")
    e("s_endpgm")
    e('.section .rodata,"a"')
    e(".p2align 6")
    e(f".amdhsa_kernel {k}")
    e("  .amdhsa_next_free_vgpr 256")
    e("  .amdhsa_next_free_sgpr 102")
    e("  .amdhsa_accum_offset 256")
    e("  .amdhsa_group_segment_fixed_size 0")
    e("  .amdhsa_kernarg_size 104")
    e("  .amdhsa_user_sgpr_count 2")
    e("  .amdhsa_user_sgpr_kernarg_segment_ptr 1")
    e("  .amdhsa_system_sgpr_workgroup_id_x 1")
    e(".end_amdhsa_kernel")

hdr = open(f"cdna_kernels/{NAME}.s.ref").read().split("\n")
for h in hdr:
    if h.startswith(";") and "@launch" not in h and "Override launch" not in h and "grid=ceil" not in h:
        e(h)
e(f"; @launch grid=(256,1,1) block=(512,1,1) lds={L_END}")
e('.amdgcn_target "amdgcn-amd-amdhsa--gfx950"')
gen()
open(OUT, "w").write("\n".join(L) + "\n")
print("wrote", OUT, len(L), "lines; lds", L_END)
```

```python
import sys, struct
NAME = "sequential_preLN__gqa_block_cached__mixer_token_mlp__decode"
OUT = sys.argv[1] if len(sys.argv) > 1 else f"cdna_kernels/{NAME}.s"
STAMP = len(sys.argv) > 2 and sys.argv[2] == "stamp"

WS_QG = 0x0
WS_PG = 0x20000
PG_STRIDE = 258*16
WS_OG = 0x130000
WS_CNT = 0x170000
L_WOQ = 0
L_XN  = 114688
L_QL  = L_XN + 7168
L_CMB = L_QL + 1024
L_ML  = L_CMB + 16384
L_OL  = L_ML + 128
L_H   = L_OL + 4096
L_NON = L_H + 1792
L_ML2 = L_NON + 16
L_END = L_ML2 + 64

L = []
def e(s=""): L.append(s)
def lbl(s): L.append(s + ":")
C_SCALE = 0.0625 * 1.4426950408889634
def f2u(x): return struct.unpack("<I", struct.pack("<f", x))[0]
def hexf(x): return "0x%08x" % f2u(x)
DPPM = "row_mask:0xf bank_mask:0xf"
nstamp = [0]
def stamp():
    if STAMP:
        n = nstamp[0]; nstamp[0] += 1
        e(f"s_memrealtime s[{80+2*n}:{81+2*n}]")

def wave_allreduce(v, t1, t2, op="add"):
    ins = {"add": "v_add_f32", "max": "v_max_f32"}[op]
    for mod in ["quad_perm:[1,0,3,2]", "quad_perm:[2,3,0,1]", "row_half_mirror", "row_mirror"]:
        e("s_nop 1")
        e(f"{ins}_dpp v{v}, v{v}, v{v} {mod} {DPPM}")
    for sw in ["v_permlane16_swap_b32", "v_permlane32_swap_b32"]:
        e(f"v_mov_b32 v{t1}, v{v}")
        e(f"v_mov_b32 v{t2}, v{v}")
        e("s_nop 1")
        e(f"{sw} v{t1}, v{t2}")
        e("s_nop 1")
        e(f"{ins} v{v}, v{t1}, v{t2}")

def srd(d, b, nbytes, off=0):
    if off:
        e(f"s_add_u32 s{d}, s{b}, {off}")
        e(f"s_addc_u32 s{d+1}, s{b+1}, 0")
        e(f"s_and_b32 s{d+1}, s{d+1}, 0xffff")
    else:
        e(f"s_mov_b32 s{d}, s{b}")
        e(f"s_and_b32 s{d+1}, s{b+1}, 0xffff")
    e(f"s_mov_b32 s{d+2}, {nbytes}")
    e(f"s_mov_b32 s{d+3}, 0x00020000")

def round_bf16(v, t):
    e(f"v_cvt_pk_bf16_f32 v{t}, v{v}, v{v}")
    e(f"v_lshlrev_b32 v{v}, 16, v{t}")

def layernorm_wave(xs, n, t, eps=1e-5):
    s, a, b, m, c, d = t, t+1, t+2, t+3, t+4, t+5
    e(f"v_mov_b32 v{s}, v{xs[0]}")
    for x in xs[1:]:
        e(f"v_add_f32 v{s}, v{s}, v{x}")
    wave_allreduce(s, a, b)
    e(f"v_mul_f32 v{m}, {hexf(1.0/n)}, v{s}")
    e(f"v_sub_f32 v{c}, v{xs[0]}, v{m}")
    e(f"v_mul_f32 v{s}, v{c}, v{c}")
    for x in xs[1:]:
        e(f"v_sub_f32 v{c}, v{x}, v{m}")
        e(f"v_fmac_f32 v{s}, v{c}, v{c}")
    wave_allreduce(s, a, b)
    e(f"v_mul_f32 v{s}, {hexf(1.0/n)}, v{s}")
    round_bf16(m, a)
    round_bf16(s, a)
    e(f"v_add_f32 v{s}, {hexf(eps)}, v{s}")
    round_bf16(s, a)
    e(f"v_sqrt_f32 v{s}, v{s}")
    e("s_nop 0")
    round_bf16(s, a)
    e(f"v_rcp_f32 v{d}, v{s}")
    e("s_nop 0")
    for x in xs:
        e(f"v_sub_f32 v{x}, v{x}, v{m}")
        round_bf16(x, a)
        e(f"v_mul_f32 v{c}, v{x}, v{d}")
        e(f"v_fma_f32 v{a}, -v{c}, v{s}, v{x}")
        e(f"v_fma_f32 v{x}, v{a}, v{d}, v{c}")
        round_bf16(x, a)

KB, VB, TB, OB = 32, 96, 160, 192
QB, SB, PB = 2, 10, 18
VM, VL, VMC, VKO, VVO, VT1, VT2, VT3, VBP, VT4 = 22, 23, 24, 25, 26, 27, 28, 29, 30, 31
import os
KNT = os.environ.get("KNT"," nt")
VNT = os.environ.get("VNT"," nt")
S_WAVE, S_HKV, S_B, S_SPLIT, S_PAIR, S_BASE, S_CNT, S_SLO, S_SHI, S_C = 3, 60, 61, 62, 63, 64, 65, 66, 67, 68
S_N = 78
S_PB = 15
VAT, VZ = 31, 1+0
S_CO = 14

def loads_K():
    for i in range(8):
        for jj in range(2):
            r = KB + (i*2+jj)*4
            e(f"buffer_load_dwordx4 v[{r}:{r+3}], v{VKO}, s[32:35], s{S_BASE} offen offset:{i*512+jj*256}{KNT}")
def loads_V():
    for h in range(2):
        for i in range(8):
            r = VB + (h*8+i)*4
            e(f"buffer_load_dwordx4 v[{r}:{r+3}], v{VVO}, s[36:39], s{S_BASE} offen offset:{i*512+h*256}{VNT}")

def poll(tag, issue, gregs, sleep=4):
    lbl(f"{tag}_RETRY")
    issue()
    e("s_waitcnt vmcnt(0)")
    e("s_mov_b64 s[72:73], exec")
    for g in gregs:
        e(f"v_cmp_eq_u64 vcc, s[{S_N}:{S_N+1}], v[{g+2}:{g+3}]")
        e("s_and_b64 s[72:73], s[72:73], vcc")
    e("s_cmp_eq_u64 s[72:73], exec")
    e(f"s_cbranch_scc1 {tag}_OK")
    e(f"s_sleep {sleep}")
    e(f"s_branch {tag}_RETRY")
    lbl(f"{tag}_OK")

def gen():
    k = f"{NAME}_kernel"
    e(".text"); e(f".globl {k}"); e(".p2align 8"); e(f".type {k},@function"); lbl(k)
    stamp()
    e("s_cmp_ge_u32 s2, 256")
    e("s_cbranch_scc1 L_END")
    e("s_load_dwordx8 s[4:11], s[0:1], 0")
    e("s_load_dwordx2 s[12:13], s[0:1], 32")
    e("s_load_dwordx8 s[16:23], s[0:1], 48")
    e("s_load_dwordx4 s[24:27], s[0:1], 80")
    e("s_load_dwordx2 s[28:29], s[0:1], 96")
    e("s_memrealtime s[74:75]")
    e(f"v_lshrrev_b32 v{VT4}, 6, v0")
    e("v_and_b32 v1, 63, v0")
    e(f"v_readfirstlane_b32 s{S_WAVE}, v{VT4}")
    e(f"s_lshr_b32 s{S_PAIR}, s2, 2")
    e(f"s_and_b32 s{S_SPLIT}, s2, 3")
    e(f"s_and_b32 s{S_HKV}, s{S_PAIR}, 7")
    e(f"s_lshr_b32 s{S_B}, s{S_PAIR}, 3")
    e(f"s_mov_b32 s{S_SLO}, 0x05040100")
    e(f"s_mov_b32 s{S_SHI}, 0x07060302")
    e(f"s_mov_b32 s{S_C}, {hexf(C_SCALE)}")
    e(f"s_lshl_b32 s{S_PB}, s{S_PAIR}, 22")
    e(f"s_lshl_b32 s69, s{S_SPLIT}, 17")
    e(f"s_add_u32 s{S_BASE}, s{S_PB}, s69")
    e(f"s_lshl_b32 s69, s{S_WAVE}, 14")
    e(f"s_add_u32 s{S_BASE}, s{S_BASE}, s69")
    e(f"v_and_b32 v{VT1}, 15, v1")
    e(f"v_lshrrev_b32 v{VT2}, 4, v1")
    e(f"v_lshrrev_b32 v{VT3}, 2, v{VT1}")
    e(f"v_lshlrev_b32 v{VKO}, 12, v{VT3}")
    e(f"v_lshl_add_u32 v{VKO}, v{VT2}, 6, v{VKO}")
    e(f"v_and_b32 v{VT3}, 3, v{VT1}")
    e(f"v_lshl_add_u32 v{VKO}, v{VT3}, 4, v{VKO}")
    e(f"v_lshlrev_b32 v{VVO}, 12, v{VT2}")
    e(f"v_lshl_add_u32 v{VVO}, v{VT1}, 4, v{VVO}")
    e(f"v_lshlrev_b32 v{VBP}, 4, v{VT2}")
    e("s_waitcnt lgkmcnt(0)")
    srd(32, 6, 0x10000000)
    srd(36, 8, 0x10000000)
    srd(40, 4, 8*448*2)
    srd(44, 10, 448*4096*2)
    srd(48, 26, 256)
    e(f"s_mul_i32 s69, s{S_WAVE}, 896")
    e(f"v_lshlrev_b32 v{VT3}, 1, v1")
    xs = list(range(10, 17))
    for i in range(7):
        e(f"buffer_load_ushort v{xs[i]}, v{VT3}, s[40:43], s69 offen offset:{i*128}")
    e(f"s_lshl_b32 s70, s{S_SPLIT}, 3")
    e(f"s_add_u32 s77, s70, s{S_B}")
    e(f"s_cmp_eq_u32 s{S_WAVE}, 7")
    e("s_cbranch_scc1 L_NONCE")
    e(f"v_lshrrev_b32 v{VT4}, 3, v1")
    e(f"v_lshlrev_b32 v{VT4}, 16, v{VT4}")
    e(f"v_and_b32 v{VT3}, 7, v1")
    e(f"v_lshl_add_u32 v{VT4}, v{VT3}, 2, v{VT4}")
    e("s_lshl_b32 s70, s77, 5")
    e(f"s_lshl_b32 s71, s{S_HKV}, 10")
    e("s_add_u32 s70, s70, s71")
    e(f"s_lshl_b32 s71, s{S_WAVE}, 19")
    e("s_add_u32 s71, s71, s70")
    for i in range(8):
        e(f"buffer_load_dword v{160+i}, v{VT4}, s[44:47], s71 offen")
        e("s_add_u32 s71, s71, 8192")
    e("s_waitcnt vmcnt(8)")
    e("s_branch L_LN")
    lbl("L_NONCE")
    e("s_or_b32 s74, s74, 1")
    e("v_mov_b32 v160, s74")
    e("v_mov_b32 v161, s75")
    e("v_mov_b32 v162, 0")
    e("v_mov_b32 v163, 0")
    e("v_mov_b32 v164, 0")
    e("s_cmp_ge_u32 s2, 8")
    e("s_cbranch_scc1 L_NOCAS")
    e("s_mov_b64 exec, 1")
    e("buffer_atomic_cmpswap_x2 v[160:163], v164, s[48:51], 0 offen")
    e("s_mov_b64 exec, -1")
    e("s_waitcnt vmcnt(1)")
    e("s_branch L_LN")
    lbl("L_NOCAS")
    e("s_waitcnt vmcnt(0)")
    lbl("L_LN")
    stamp()
    for x in xs:
        e(f"v_lshlrev_b32 v{x}, 16, v{x}")
    layernorm_wave(xs, 448, 2)
    e(f"v_lshlrev_b32 v{VT3}, 1, v1")
    e(f"s_add_u32 s69, s69, {L_XN}")
    e(f"v_add_u32 v{VT3}, s69, v{VT3}")
    for i, x in enumerate(xs):
        e(f"v_lshrrev_b32 v{x}, 16, v{x}")
        e(f"ds_write_b16 v{VT3}, v{x} offset:{i*128}")
    e(f"v_and_b32 v{VT3}, 7, v1")
    e(f"v_mul_u32_u24 v{VT3}, 896, v{VT3}")
    e(f"v_lshrrev_b32 v{VT4}, 3, v1")
    e(f"v_lshl_add_u32 v{VT3}, v{VT4}, 4, v{VT3}")
    e(f"s_lshl_b32 s69, s{S_WAVE}, 7")
    e(f"s_add_u32 s69, s69, {L_XN}")
    e(f"v_add_u32 v{VT3}, s69, v{VT3}")
    e("s_waitcnt lgkmcnt(0)")
    e("s_barrier")
    e(f"s_cmp_eq_u32 s{S_WAVE}, 7")
    e("s_cbranch_scc1 L_NONCE2")
    e(f"ds_read_b128 v[2:5], v{VT3}")
    e("s_waitcnt vmcnt(0)")
    for p in range(4):
        e(f"v_perm_b32 v{168+p}, v{161+2*p}, v{160+2*p}, s{S_SLO}")
        e(f"v_perm_b32 v{172+p}, v{161+2*p}, v{160+2*p}, s{S_SHI}")
    e(f"v_lshrrev_b32 v{VT3}, 4, v1")
    e(f"v_lshlrev_b32 v{VT3}, 8, v{VT3}")
    e(f"v_and_b32 v{VT4}, 7, v1")
    e(f"v_lshl_add_u32 v{VT3}, v{VT4}, 3, v{VT3}")
    e(f"s_lshl_b32 s69, s{S_WAVE}, 10")
    e(f"s_add_u32 s69, s69, {L_CMB}")
    e(f"v_add_u32 v{VT3}, s69, v{VT3}")
    e(f"v_lshrrev_b32 v{VT4}, 5, v1")
    e(f"v_bfe_u32 v6, v1, 3, 1")
    e(f"v_cmp_eq_u32 vcc, v{VT4}, v6")
    e("s_waitcnt lgkmcnt(0)")
    e("v_mfma_f32_16x16x32_bf16 v[176:179], v[2:5], v[168:171], 0")
    e("v_mfma_f32_16x16x32_bf16 v[180:183], v[2:5], v[172:175], 0")
    e("s_and_saveexec_b64 s[72:73], vcc")
    e("s_nop 7")
    for r in range(4):
        e(f"v_mov_b32 v6, v{176+r}")
        e(f"v_mov_b32 v7, v{180+r}")
        e(f"ds_write_b64 v{VT3}, v[6:7] offset:{r*64}")
    e("s_mov_b64 exec, s[72:73]")
    e("s_branch L_QRED")
    lbl("L_NONCE2")
    e("buffer_load_dwordx2 v[2:3], v164, s[48:51], 0 offen sc1")
    e("s_waitcnt vmcnt(0)")
    e("v_readfirstlane_b32 s70, v2")
    e("v_readfirstlane_b32 s71, v3")
    e("s_cmp_eq_u64 s[70:71], 0")
    e("s_cbranch_scc1 L_NONCE2")
    e(f"v_mov_b32 v4, {L_NON}")
    e("ds_write_b64 v4, v[2:3]")
    lbl("L_QRED")
    e("s_waitcnt lgkmcnt(0)")
    e("s_barrier")
    stamp()
    e(f"v_mov_b32 v4, {L_NON}")
    e("ds_read_b64 v[2:3], v4")
    e("s_waitcnt lgkmcnt(0)")
    e(f"v_readfirstlane_b32 s{S_N}, v2")
    e(f"v_readfirstlane_b32 s{S_N+1}, v3")
    e(f"s_cmp_lg_u32 s{S_WAVE}, 0")
    e("s_cbranch_scc1 L_JOIN")
    e(f"v_lshlrev_b32 v{VT3}, 3, v1")
    e(f"v_add_u32 v{VT3}, {L_CMB}, v{VT3}")
    for i in range(14):
        e(f"ds_read_b64 v[{32+2*i}:{33+2*i}], v{VT3} offset:{i*512}")
    srd(40, 28, 64*128*16, WS_QG)
    e(f"v_lshrrev_b32 v{VT3}, 3, v1")
    e(f"v_lshlrev_b32 v{VT3}, 14, v{VT3}")
    e(f"v_and_b32 v{VT4}, 7, v1")
    e(f"v_lshl_add_u32 v{VT3}, v{VT4}, 3, v{VT3}")
    e(f"s_lshl_b32 s69, s{S_HKV}, 11")
    e("s_lshl_b32 s70, s77, 6")
    e("s_add_u32 s69, s69, s70")
    e(f"v_mov_b32 v14, s{S_N}")
    e(f"v_mov_b32 v15, s{S_N+1}")
    e(f"s_cmp_lg_u32 s{S_SPLIT}, 0")
    e("s_cbranch_scc1 L_NOINIT")
    srd(44, 28, 64*256, WS_CNT)
    e(f"s_lshl_b32 s70, s{S_PAIR}, 8")
    e("v_mov_b32 v12, 32")
    e("v_mov_b32 v13, 0")
    e("s_mov_b64 exec, 1")
    e("buffer_store_dword v12, v13, s[44:47], s70 offen sc1")
    e("s_mov_b64 exec, -1")
    e("s_waitcnt vmcnt(0)")
    lbl("L_NOINIT")
    e("s_waitcnt lgkmcnt(0)")
    for i in range(1, 14):
        e(f"v_add_f32 v32, v32, v{32+2*i}")
        e(f"v_add_f32 v33, v33, v{33+2*i}")
    e("v_cvt_pk_bf16_f32 v12, v32, v33")
    e("s_nop 1")
    e(f"v_mov_b32_dpp v13, v12 quad_perm:[1,0,3,2] {DPPM}")
    e("s_mov_b32 exec_lo, 0x55555555")
    e("s_mov_b32 exec_hi, 0x55555555")
    e(f"buffer_store_dwordx4 v[12:15], v{VT3}, s[40:43], s69 offen sc1")
    e("s_mov_b64 exec, -1")
    stamp()
    e(f"v_lshlrev_b32 v{VT3}, 4, v1")
    e(f"s_lshl_b32 s69, s{S_PAIR}, 11")
    def iss():
        e(f"buffer_load_dwordx4 v[32:35], v{VT3}, s[40:43], s69 offen sc1")
        e(f"buffer_load_dwordx4 v[36:39], v{VT3}, s[40:43], s69 offen offset:1024 sc1")
    poll("L_H0", iss, [32, 36], sleep=2)
    stamp()
    e(f"v_lshlrev_b32 v{VT3}, 3, v1")
    e(f"v_add_u32 v{VT3}, {L_QL}, v{VT3}")
    e(f"ds_write_b64 v{VT3}, v[32:33]")
    e(f"ds_write_b64 v{VT3}, v[36:37] offset:512")
    e("s_waitcnt lgkmcnt(0)")
    lbl("L_JOIN")
    e("s_barrier")
    stamp()
    e(f"v_and_b32 v{VT1}, 15, v1")
    e(f"v_lshrrev_b32 v{VT2}, 4, v1")
    e(f"v_and_b32 v{VT3}, 7, v{VT1}")
    e(f"v_lshrrev_b32 v{VT4}, 2, v{VT3}")
    e(f"v_lshlrev_b32 v{VT4}, 9, v{VT4}")
    e(f"v_lshl_add_u32 v{VT4}, v{VT2}, 6, v{VT4}")
    e(f"v_and_b32 v{VT3}, 3, v{VT1}")
    e(f"v_lshl_add_u32 v{VT4}, v{VT3}, 4, v{VT4}")
    e(f"v_add_u32 v{VT4}, {L_QL}, v{VT4}")
    e(f"ds_read_b128 v[{QB}:{QB+3}], v{VT4}")
    e(f"ds_read_b128 v[{QB+4}:{QB+7}], v{VT4} offset:256")
    srd(8, 28, 64*256, WS_CNT)
    e(f"s_lshl_b32 s{S_CO}, s{S_PAIR}, 8")
    loads_K()
    e(f"v_mov_b32 v{VAT}, 1")
    e("s_mov_b64 exec, 1")
    e(f"buffer_atomic_add v{VAT}, v{VZ}, s[8:11], s{S_CO} offen sc0")
    e("s_mov_b64 exec, -1")
    loads_V()
    e(f"s_cmp_lt_u32 s{S_WAVE}, 4")
    e("s_cbranch_scc1 L_NODMA")
    srd(40, 12, 4096*448*2)
    e(f"v_mul_u32_u24 v{VT3}, 4682, v1")
    e(f"v_lshrrev_b32 v{VT3}, 16, v{VT3}")
    e(f"v_mul_u32_u24 v{VT2}, 672, v{VT3}")
    e(f"v_lshl_add_u32 v{VT2}, v1, 4, v{VT2}")
    e(f"s_sub_u32 s69, s{S_WAVE}, 4")
    e("s_mul_i32 s70, s69, 28672")
    e(f"s_lshl_b32 s71, s{S_HKV}, 2")
    e("s_add_u32 s71, s71, s69")
    e("s_mul_i32 s71, s71, 114688")
    e(f"s_mul_i32 s72, s{S_SPLIT}, 224")
    e("s_add_u32 s71, s71, s72")
    e("s_mov_b32 s72, 0")
    e("s_mov_b32 exec_hi, 0x00ffffff")
    lbl("L_WODMA")
    e("s_mov_b32 m0, s70")
    e("s_add_u32 s70, s70, 896")
    e(f"buffer_load_dwordx4 v{VT2}, s[40:43], s71 offen lds")
    e("s_add_u32 s71, s71, 3584")
    e("s_add_u32 s72, s72, 1")
    e("s_cmp_lt_u32 s72, 32")
    e("s_cbranch_scc1 L_WODMA")
    e("s_mov_b64 exec, -1")
    lbl("L_NODMA")
    for r in range(64):
        e(f"v_mov_b32 v{OB+r}, 0")
    e(f"v_mov_b32 v{VM}, 0xff7fffff")
    e(f"v_mov_b32 v{VL}, 0")
    e(f"v_mov_b32 v{VMC}, 0")
    e(f"v_cmp_gt_u32 vcc, 8, v{VT1}")
    e("s_waitcnt lgkmcnt(0)")
    e("s_nop 0")
    for r in range(8):
        e(f"v_cndmask_b32 v{QB+r}, 0, v{QB+r}, vcc")
    e(f"s_mov_b32 s{S_CNT}, 0")
    srd(40, 16, 3584)
    srd(44, 18, 3584)
    srd(48, 20, 3584)
    srd(52, 22, 2)
    srd(56, 4, 8*448*2)
    lbl("L_LOOP")
    e("s_waitcnt vmcnt(17)")
    for jj in range(2):
        for i in range(8):
            d = TB + i*4
            kk = KB + (i*2+jj)*4
            c = "0" if jj == 0 else f"v[{d}:{d+3}]"
            e(f"v_mfma_f32_16x16x32_bf16 v[{d}:{d+3}], v[{kk}:{kk+3}], v[{QB+jj*4}:{QB+jj*4+3}], {c}")
    e("s_waitcnt vmcnt(16)")
    e(f"v_readfirstlane_b32 s69, v{VAT}")
    e("s_cmp_ge_u32 s69, 256")
    e("s_cbranch_scc1 L_LASTK")
    e("s_lshl_b32 s69, s69, 14")
    e(f"s_add_u32 s{S_BASE}, s{S_PB}, s69")
    loads_K()
    e(f"v_mov_b32 v{VAT}, 1")
    e("s_mov_b64 exec, 1")
    e(f"buffer_atomic_add v{VAT}, v{VZ}, s[8:11], s{S_CO} offen sc0")
    e("s_mov_b64 exec, -1")
    e("s_branch L_AFTK")
    lbl("L_LASTK")
    e(f"s_mov_b32 s{S_CNT}, 1")
    e(f"v_mul_u32_u24 v{VT1}, 56, v1")
    for base, sr in [(32, 40), (46, 44), (60, 48)]:
        for i in range(7):
            e(f"buffer_load_dwordx2 v[{base+2*i}:{base+2*i+1}], v{VT1}, s[{sr}:{sr+3}], 0 offen offset:{i*8}")
    e(f"v_lshlrev_b32 v{VT1}, 1, v0")
    e(f"s_mul_i32 s69, s{S_B}, 896")
    e(f"buffer_load_ushort v74, v{VT1}, s[56:59], s69 offen")
    e(f"v_mov_b32 v{VT1}, 0")
    e(f"buffer_load_ushort v75, v{VT1}, s[52:55], 0 offen")
    lbl("L_AFTK")
    for i in range(8):
        d = TB + i*4
        e(f"v_mov_b32_dpp v{SB+i}, v{d} quad_perm:[0,0,0,0] {DPPM}")
        e(f"v_add_f32_dpp v{SB+i}, v{d+1}, v{SB+i} quad_perm:[1,1,1,1] {DPPM}")
        e(f"v_add_f32_dpp v{SB+i}, v{d+2}, v{SB+i} quad_perm:[2,2,2,2] {DPPM}")
        e(f"v_add_f32_dpp v{SB+i}, v{d+3}, v{SB+i} quad_perm:[3,3,3,3] {DPPM}")
    for i in range(0, 8, 2):
        e(f"v_cvt_pk_bf16_f32 v{VT1}, v{SB+i}, v{SB+i+1}")
        e(f"v_lshlrev_b32 v{SB+i}, 16, v{VT1}")
        e(f"v_and_b32 v{SB+i+1}, 0xffff0000, v{VT1}")
    e(f"v_max3_f32 v{VT1}, v{SB}, v{SB+1}, v{SB+2}")
    e(f"v_max3_f32 v{VT1}, v{VT1}, v{SB+3}, v{SB+4}")
    e(f"v_max3_f32 v{VT1}, v{VT1}, v{SB+5}, v{SB+6}")
    e(f"v_max_f32 v{VT1}, v{VT1}, v{SB+7}")
    e(f"v_cmp_gt_f32 vcc, v{VT1}, v{VM}")
    e("s_cbranch_vccz L_FAST")
    for sw in ["v_permlane16_swap_b32", "v_permlane32_swap_b32"]:
        e(f"v_mov_b32 v{VT2}, v{VT1}")
        e(f"v_mov_b32 v{VT3}, v{VT1}")
        e("s_nop 1")
        e(f"{sw} v{VT2}, v{VT3}")
        e("s_nop 1")
        e(f"v_max_f32 v{VT1}, v{VT2}, v{VT3}")
    e(f"v_max_f32 v{VT1}, v{VT1}, v{VM}")
    e(f"v_sub_f32 v{VT2}, v{VM}, v{VT1}")
    e(f"v_mul_f32 v{VT2}, s{S_C}, v{VT2}")
    e(f"v_exp_f32 v{VT2}, v{VT2}")
    e(f"v_mov_b32 v{VM}, v{VT1}")
    e(f"v_mul_f32 v{VMC}, s{S_C}, v{VT1}")
    e(f"v_mul_f32 v{VL}, v{VL}, v{VT2}")
    e(f"ds_bpermute_b32 v{VT3}, v{VBP}, v{VT2}")
    e("s_waitcnt lgkmcnt(0)")
    for r in range(64):
        e(f"v_mul_f32 v{OB+r}, v{OB+r}, v{VT3}")
    lbl("L_FAST")
    for i in range(8):
        e(f"v_fma_f32 v{SB+i}, v{SB+i}, s{S_C}, -v{VMC}")
    for i in range(8):
        e(f"v_exp_f32 v{SB+i}, v{SB+i}")
    e("s_nop 0")
    for i in range(0, 8, 2):
        e(f"v_cvt_pk_bf16_f32 v{PB+i//2}, v{SB+i}, v{SB+i+1}")
    e(f"v_add_f32 v{VT1}, v{SB}, v{SB+1}")
    e(f"v_add_f32 v{VT2}, v{SB+2}, v{SB+3}")
    e(f"v_add_f32 v{VT3}, v{SB+4}, v{SB+5}")
    e(f"v_add_f32 v{VT1}, v{VT1}, v{VT2}")
    e(f"v_add_f32 v{VT2}, v{SB+6}, v{SB+7}")
    e(f"v_add_f32 v{VT3}, v{VT3}, v{VT2}")
    e(f"v_add_f32 v{VT1}, v{VT1}, v{VT3}")
    e(f"v_add_f32 v{VL}, v{VL}, v{VT1}")
    e(f"s_cmp_eq_u32 s{S_CNT}, 1")
    e("s_cbranch_scc0 L_W16")
    e("s_waitcnt vmcnt(0)")
    lbl("L_W16")
    e("s_waitcnt vmcnt(17)")
    for h in range(2):
        for w in range(4):
            for p in range(4):
                a = VB + (h*8+2*p)*4 + w
                b = VB + (h*8+2*p+1)*4 + w
                e(f"v_perm_b32 v{TB+(2*w)*4+p}, v{b}, v{a}, s{S_SLO}")
                e(f"v_perm_b32 v{TB+(2*w+1)*4+p}, v{b}, v{a}, s{S_SHI}")
        if h == 1:
            e(f"s_cmp_eq_u32 s{S_CNT}, 1")
            e("s_cbranch_scc1 L_SKIPV")
            loads_V()
            lbl("L_SKIPV")
        e("s_nop 1")
        for j in range(8):
            o = OB + (h*8+j)*4
            e(f"v_mfma_f32_16x16x32_bf16 v[{o}:{o+3}], v[{PB}:{PB+3}], v[{TB+j*4}:{TB+j*4+3}], v[{o}:{o+3}]")
    e(f"s_cmp_eq_u32 s{S_CNT}, 0")
    e("s_cbranch_scc1 L_LOOP")
    for sw in ["v_permlane16_swap_b32", "v_permlane32_swap_b32"]:
        e(f"v_mov_b32 v{VT2}, v{VL}")
        e(f"v_mov_b32 v{VT3}, v{VL}")
        e("s_nop 1")
        e(f"{sw} v{VT2}, v{VT3}")
        e("s_nop 1")
        e(f"v_add_f32 v{VL}, v{VT2}, v{VT3}")
    e(f"v_and_b32 v{VT1}, 15, v1")
    e(f"v_lshrrev_b32 v{VT2}, 4, v1")
    e(f"v_lshlrev_b32 v{VT3}, 10, v{VT2}")
    e(f"v_lshl_add_u32 v{VT3}, v{VT1}, 5, v{VT3}")
    e(f"s_lshl_b32 s69, s{S_WAVE}, 11")
    e(f"s_add_u32 s69, s69, {L_CMB}")
    e(f"v_add_u32 v{VT3}, s69, v{VT3}")
    e("v_cmp_gt_u32 vcc, 32, v1")
    e("s_and_saveexec_b64 s[72:73], vcc")
    for h in range(2):
        for j in range(8):
            e(f"ds_write_b32 v{VT3}, v{OB+(h*8+j)*4} offset:{(h*128+j)*4}")
    e("s_mov_b64 exec, s[72:73]")
    e(f"v_lshlrev_b32 v{VT3}, 1, v1")
    e(f"s_lshl_b32 s69, s{S_WAVE}, 4")
    e(f"s_add_u32 s69, s69, {L_ML}")
    e(f"v_add_u32 v{VT3}, s69, v{VT3}")
    e(f"v_and_b32 v{VT1}, 0xfb, v1")
    e(f"v_cmp_eq_u32 vcc, 0, v{VT1}")
    e("s_and_saveexec_b64 s[72:73], vcc")
    e(f"ds_write_b64 v{VT3}, v[{VM}:{VM+1}]")
    e("s_mov_b64 exec, s[72:73]")
    srd(40, 28, 256*PG_STRIDE, WS_PG)
    srd(52, 28, 64*3584, WS_OG)
    e("v_lshrrev_b32 v2, 8, v0")
    e("v_lshlrev_b32 v3, 3, v2")
    e(f"v_add_u32 v3, {L_ML}, v3")
    e("v_lshlrev_b32 v4, 2, v0")
    e(f"v_add_u32 v5, {L_CMB}, v4")
    e("v_and_b32 v9, 0xfffffffe, v0")
    e("v_lshlrev_b32 v9, 3, v9")
    e(f"v_mov_b32 v14, s{S_N}")
    e(f"v_mov_b32 v15, s{S_N+1}")
    e(f"v_mov_b32 v18, s{S_N}")
    e(f"v_mov_b32 v19, s{S_N+1}")
    e("s_waitcnt lgkmcnt(0)")
    e("s_barrier")
    stamp()
    for w in range(8):
        e(f"ds_read_b64 v[{96+2*w}:{97+2*w}], v3 offset:{w*16}")
    for w in range(8):
        e(f"ds_read_b32 v{112+w}, v5 offset:{w*2048}")
    e(f"s_lshl_b32 s69, s{S_PAIR}, 2")
    e(f"s_add_u32 s69, s69, s{S_SPLIT}")
    e(f"s_mul_i32 s69, s69, {PG_STRIDE}")
    e("v_lshlrev_b32 v8, 4, v2")
    e("v_add_u32 v8, 4096, v8")
    e("s_waitcnt lgkmcnt(0)")
    e("v_max3_f32 v16, v96, v98, v100")
    e("v_max3_f32 v16, v16, v102, v104")
    e("v_max3_f32 v16, v16, v106, v108")
    e("v_max_f32 v16, v16, v110")
    for w in range(8):
        e(f"v_sub_f32 v{96+2*w}, v{96+2*w}, v16")
        e(f"v_mul_f32 v{96+2*w}, s{S_C}, v{96+2*w}")
        e(f"v_exp_f32 v{96+2*w}, v{96+2*w}")
    e("s_nop 0")
    e("v_mul_f32 v17, v96, v97")
    e("v_mul_f32 v12, v96, v112")
    for w in range(1, 8):
        e(f"v_fmac_f32 v17, v{96+2*w}, v{97+2*w}")
        e(f"v_fmac_f32 v12, v{96+2*w}, v{112+w}")
    e("s_nop 1")
    e(f"v_mov_b32_dpp v13, v12 quad_perm:[1,0,3,2] {DPPM}")
    e("s_mov_b32 exec_lo, 0x55555555")
    e("s_mov_b32 exec_hi, 0x55555555")
    e("buffer_store_dwordx4 v[12:15], v9, s[40:43], s69 offen sc1")
    e("s_mov_b64 exec, -1")
    e("v_and_b32 v6, 255, v0")
    e("v_cmp_eq_u32 vcc, 0, v6")
    e("s_and_saveexec_b64 s[72:73], vcc")
    e("buffer_store_dwordx4 v[16:19], v8, s[40:43], s69 offen sc1")
    e("s_mov_b64 exec, s[72:73]")
    e("v_mul_u32_u24 v12, 4682, v0")
    e("v_lshrrev_b32 v12, 16, v12")
    e("v_mul_u32_u24 v13, 14, v12")
    e("v_sub_u32 v13, v0, v13")
    e("v_mul_u32_u24 v20, 3584, v12")
    e("v_lshl_add_u32 v20, v13, 4, v20")
    e("v_lshlrev_b32 v21, 7, v12")
    e(f"v_add_u32 v21, {L_OL}, v21")
    e("v_mul_u32_u24 v22, 448, v12")
    e("v_lshl_add_u32 v22, v13, 5, v22")
    e(f"v_add_u32 v22, {L_CMB}, v22")
    e("v_lshlrev_b32 v6, 3, v0")
    e(f"v_add_u32 v6, {L_OL}, v6")
    e(f"s_mul_i32 s69, s{S_PAIR}, {4*PG_STRIDE}")
    e(f"s_cmp_lg_u32 s{S_WAVE}, 0")
    e("s_cbranch_scc1 L_H1_DONE")
    e("v_lshrrev_b32 v10, 1, v1")
    e(f"v_mul_u32_u24 v10, {PG_STRIDE}, v10")
    e("v_and_b32 v11, 1, v1")
    e("v_lshl_add_u32 v10, v11, 4, v10")
    e("v_add_u32 v10, 4096, v10")
    e("v_lshlrev_b32 v11, 3, v1")
    e(f"v_add_u32 v11, {L_ML2}, v11")
    e("s_mov_b64 exec, 0xff")
    poll("L_H1", lambda: e("buffer_load_dwordx4 v[96:99], v10, s[40:43], s69 offen sc1"), [96], sleep=6)
    e("ds_write_b64 v11, v[96:97]")
    e("s_mov_b64 exec, -1")
    e("s_waitcnt lgkmcnt(0)")
    lbl("L_H1_DONE")
    e("s_barrier")
    stamp()
    e("v_lshlrev_b32 v3, 3, v2")
    e(f"v_add_u32 v3, {L_ML2}, v3")
    for s in range(4):
        e(f"ds_read_b64 v[{112+2*s}:{113+2*s}], v3 offset:{s*16}")
    def iss2():
        e("s_mov_b32 s70, s69")
        for s in range(4):
            e(f"buffer_load_dwordx4 v[{96+4*s}:{99+4*s}], v9, s[40:43], s70 offen sc1")
            e(f"s_add_u32 s70, s70, {PG_STRIDE}")
    poll("L_T2", iss2, [96, 100, 104, 108], sleep=1)
    e("v_and_b32 v7, 1, v0")
    e("v_cmp_eq_u32 vcc, 1, v7")
    e("s_waitcnt lgkmcnt(0)")
    e("s_nop 0")
    for s in range(4):
        e(f"v_cndmask_b32 v{96+4*s}, v{96+4*s}, v{97+4*s}, vcc")
    e("v_max3_f32 v10, v112, v114, v116")
    e("v_max_f32 v10, v10, v118")
    for s in range(4):
        e(f"v_sub_f32 v{112+2*s}, v{112+2*s}, v10")
        e(f"v_mul_f32 v{112+2*s}, s{S_C}, v{112+2*s}")
        e(f"v_exp_f32 v{112+2*s}, v{112+2*s}")
    e("s_nop 0")
    e("v_mul_f32 v11, v112, v113")
    e("v_mul_f32 v7, v112, v96")
    for s in range(1, 4):
        e(f"v_fmac_f32 v11, v{112+2*s}, v{113+2*s}")
        e(f"v_fmac_f32 v7, v{112+2*s}, v{96+4*s}")
    e("v_rcp_f32 v10, v11")
    e("s_nop 0")
    e("v_mul_f32 v8, v7, v10")
    e("v_fma_f32 v7, -v8, v11, v7")
    e("v_fma_f32 v8, v7, v10, v8")
    e("v_cvt_pk_bf16_f32 v8, v8, v8")
    e("v_lshlrev_b32 v11, 16, v8")
    e("v_and_b32 v10, 0xffff, v8")
    e("ds_write_b64 v6, v[10:11]")
    e("s_waitcnt lgkmcnt(0)")
    e("s_barrier")
    e(f"s_cmp_eq_u32 s{S_WAVE}, 7")
    e("s_cbranch_scc1 L_T3SKIP")
    for i in range(16):
        e(f"ds_read_b128 v[{96+4*i}:{99+4*i}], v20 offset:{i*224}")
    for i in range(8):
        e(f"ds_read_b128 v[{160+4*i}:{163+4*i}], v21 offset:{i*16}")
    for j in range(8):
        e(f"v_mov_b32 v{192+j}, 0")
    e("s_waitcnt lgkmcnt(0)")
    for i in range(16):
        lo, hi = 160 + 2*i, 161 + 2*i
        for w in range(4):
            e(f"v_dot2_f32_bf16 v{192+2*w}, v{96+4*i+w}, v{lo}, v{192+2*w}")
            e(f"v_dot2_f32_bf16 v{193+2*w}, v{96+4*i+w}, v{hi}, v{193+2*w}")
    e("s_nop 2")
    e("ds_write_b128 v22, v[192:195]")
    e("ds_write_b128 v22, v[196:199] offset:16")
    lbl("L_T3SKIP")
    e("s_waitcnt lgkmcnt(0)")
    e("s_barrier")
    e(f"s_mul_i32 s69, s{S_B}, {8*3584}")
    e(f"s_cmp_ge_u32 s{S_WAVE}, 2")
    e("s_cbranch_scc1 L_T3B")
    for ks in range(32):
        e(f"ds_read_b32 v{96+ks}, v5 offset:{ks*448}")
    e(f"s_mul_i32 s70, s{S_HKV}, 3584")
    e(f"s_mul_i32 s71, s{S_SPLIT}, 896")
    e("s_add_u32 s70, s70, s71")
    e("s_add_u32 s70, s70, s69")
    e("v_cmp_gt_u32 vcc, 112, v0")
    e("s_and_b32 vcc_lo, vcc_lo, 0x55555555")
    e("s_and_b32 vcc_hi, vcc_hi, 0x55555555")
    e("s_waitcnt lgkmcnt(0)")
    for st in [16, 8, 4, 2]:
        for i in range(st):
            e(f"v_add_f32 v{96+i}, v{96+i}, v{96+st+i}")
    e("v_add_f32 v12, v96, v97")
    e("s_nop 1")
    e(f"v_mov_b32_dpp v13, v12 quad_perm:[1,0,3,2] {DPPM}")
    e("s_and_saveexec_b64 s[72:73], vcc")
    e("buffer_store_dwordx4 v[12:15], v9, s[52:55], s70 offen sc1")
    e("s_mov_b64 exec, s[72:73]")
    lbl("L_T3B")
    e(f"s_cmp_lg_u32 s{S_WAVE}, 0")
    e("s_cbranch_scc1 L_H2_DONE")
    e("v_mul_u32_u24 v10, 896, v1")
    e("v_add_u32 v10, 880, v10")
    e("s_mov_b32 exec_hi, 0")
    poll("L_H2", lambda: e("buffer_load_dwordx4 v[96:99], v10, s[52:55], s69 offen sc1"), [96], sleep=6)
    e("s_mov_b64 exec, -1")
    lbl("L_H2_DONE")
    e("s_barrier")
    stamp()
    e(f"s_cmp_eq_u32 s{S_WAVE}, 7")
    e("s_cbranch_scc1 L_T4SKIP")
    for (src, dst) in [(32, 128), (46, 156), (60, 184)]:
        for i in range(14):
            e(f"v_lshlrev_b32 v{dst+2*i}, 16, v{src+i}")
            e(f"v_and_b32 v{dst+2*i+1}, 0xffff0000, v{src+i}")
    def iss4():
        e("s_mov_b32 s70, s69")
        for p in range(8):
            e(f"buffer_load_dwordx4 v[{96+4*p}:{99+4*p}], v9, s[52:55], s70 offen sc1")
            e("s_add_u32 s70, s70, 3584")
    poll("L_T4", iss4, [96+4*p for p in range(8)], sleep=1)
    e("v_and_b32 v7, 1, v0")
    e("v_cmp_eq_u32 vcc, 1, v7")
    e(f"v_add_u32 v5, {L_H}, v4")
    e("s_nop 0")
    for p in range(8):
        e(f"v_cndmask_b32 v{96+4*p}, v{96+4*p}, v{97+4*p}, vcc")
    e("v_add_f32 v96, v96, v100")
    e("v_add_f32 v104, v104, v108")
    e("v_add_f32 v112, v112, v116")
    e("v_add_f32 v120, v120, v124")
    e("v_add_f32 v96, v96, v104")
    e("v_add_f32 v112, v112, v120")
    e("v_add_f32 v96, v96, v112")
    round_bf16(96, 97)
    e("v_lshlrev_b32 v74, 16, v74")
    e("v_add_f32 v96, v96, v74")
    round_bf16(96, 97)
    e("ds_write_b32 v5, v96")
    e("s_waitcnt lgkmcnt(0)")
    lbl("L_T4SKIP")
    e("s_barrier")
    e(f"s_cmp_eq_u32 s{S_WAVE}, 7")
    e("s_cbranch_scc1 L_END")
    e("v_lshlrev_b32 v6, 2, v1")
    e(f"v_add_u32 v6, {L_H}, v6")
    xs = list(range(10, 17))
    for i in range(7):
        e(f"ds_read_b32 v{xs[i]}, v6 offset:{i*256}")
    e(f"s_lshl_b32 s69, s{S_SPLIT}, 3")
    e(f"s_add_u32 s69, s69, s{S_HKV}")
    e("s_mul_i32 s69, s69, 14")
    e(f"s_lshl_b32 s70, s{S_WAVE}, 1")
    e("s_add_u32 s69, s69, s70")
    e("s_lshl_b32 s70, s69, 2")
    e(f"s_add_u32 s70, s70, {L_H}")
    e("v_mov_b32 v7, s70")
    e("ds_read_b64 v[34:35], v7")
    e("s_waitcnt lgkmcnt(0)")
    layernorm_wave(xs, 448, 2)
    layernorm_wave(xs, 448, 2)
    e("s_and_b32 s70, s69, 63")
    e("s_lshr_b32 s71, s69, 6")
    e("s_add_u32 s74, s69, 1")
    e("s_and_b32 s75, s74, 63")
    e("s_lshr_b32 s76, s74, 6")
    e("v_mov_b32 v36, v10")
    e("v_mov_b32 v37, v10")
    for i in range(1, 7):
        e(f"s_cmp_eq_u32 s71, {i}")
        e("s_cselect_b64 s[72:73], -1, 0")
        e(f"v_cndmask_b32 v36, v36, v{10+i}, s[72:73]")
        e(f"s_cmp_eq_u32 s76, {i}")
        e("s_cselect_b64 s[72:73], -1, 0")
        e(f"v_cndmask_b32 v37, v37, v{10+i}, s[72:73]")
    e("s_nop 1")
    e("v_readlane_b32 s40, v36, s70")
    e("v_readlane_b32 s41, v37, s75")
    k1 = -2.0*0.7978845608028654*1.4426950408889634
    k2 = k1*0.044715
    e(f"s_mov_b32 s42, {hexf(k1)}")
    e(f"s_mov_b32 s43, {hexf(k2)}")
    e("v_mov_b32 v40, 0")
    e("v_mov_b32 v41, 0")
    e("v_mov_b32 v42, s42")
    stamp()
    for i in range(28):
        for o in range(2):
            u, a = 44+o*4, 45+o*4
            e(f"v_fma_f32 v{u}, s{40+o}, v{128+i}, v{156+i}")
            e(f"v_mul_f32 v{a}, v{u}, v{u}")
            e(f"v_fma_f32 v{a}, s43, v{a}, v42")
            e(f"v_mul_f32 v{a}, v{a}, v{u}")
        for o in range(2):
            e(f"v_exp_f32 v{45+o*4}, v{45+o*4}")
        for o in range(2):
            e(f"v_add_f32 v{45+o*4}, 1.0, v{45+o*4}")
        for o in range(2):
            e(f"v_rcp_f32 v{45+o*4}, v{45+o*4}")
        for o in range(2):
            e(f"v_mul_f32 v{44+o*4}, v{44+o*4}, v{184+i}")
        for o in range(2):
            e(f"v_fmac_f32 v{40+o}, v{44+o*4}, v{45+o*4}")
    wave_allreduce(40, 44, 45)
    wave_allreduce(41, 44, 45)
    e("v_lshlrev_b32 v75, 16, v75")
    for o in range(2):
        round_bf16(40+o, 44)
        e(f"v_add_f32 v{40+o}, v{40+o}, v75")
        round_bf16(40+o, 44)
        e(f"v_add_f32 v{40+o}, v{40+o}, v{34+o}")
    e("v_cvt_pk_bf16_f32 v40, v40, v41")
    srd(56, 24, 8*448*2)
    e(f"s_mul_i32 s70, s{S_B}, 448")
    e("s_add_u32 s70, s70, s69")
    e("s_lshl_b32 s70, s70, 1")
    e("v_mov_b32 v7, 0")
    e("v_cmp_eq_u32 vcc, 0, v1")
    e("s_and_saveexec_b64 s[72:73], vcc")
    e("buffer_store_dword v40, v7, s[56:59], s70 offen")
    if STAMP:
        stamp()
        e("s_waitcnt lgkmcnt(0) vmcnt(0)")
        e(f"s_cmp_lg_u32 s{S_WAVE}, 0")
        e("s_cbranch_scc1 L_END")
        srd(56, 26, 256)
        e("s_not_b32 s70, s80")
        e("v_mov_b32 v2, s70")
        e("buffer_atomic_umax v2, v7, s[56:59], 0 offen offset:12")
        for i in range(1, nstamp[0]):
            e(f"v_mov_b32 v{20+i}, s{80+2*i}")
            e(f"buffer_atomic_umax v{20+i}, v7, s[56:59], 0 offen offset:{12+i*4}")
    lbl("L_END")
    e("s_endpgm")
    e('.section .rodata,"a"')
    e(".p2align 6")
    e(f".amdhsa_kernel {k}")
    e("  .amdhsa_next_free_vgpr 256")
    e("  .amdhsa_next_free_sgpr 102")
    e("  .amdhsa_accum_offset 256")
    e("  .amdhsa_group_segment_fixed_size 0")
    e("  .amdhsa_kernarg_size 104")
    e("  .amdhsa_user_sgpr_count 2")
    e("  .amdhsa_user_sgpr_kernarg_segment_ptr 1")
    e("  .amdhsa_system_sgpr_workgroup_id_x 1")
    e(".end_amdhsa_kernel")

hdr = open(f"cdna_kernels/{NAME}.s.ref").read().split("\n")
for h in hdr:
    if h.startswith(";") and "@launch" not in h and "Override launch" not in h and "grid=ceil" not in h:
        e(h)
e(f"; @launch grid=(256,1,1) block=(512,1,1) lds={L_END}")
e('.amdgcn_target "amdgcn-amd-amdhsa--gfx950"')
gen()
open(OUT, "w").write("\n".join(L) + "\n")
print("wrote", OUT, len(L), "lines; lds", L_END)
```

```python
import sys, struct
NAME = "sequential_preLN__gqa_block_cached__mixer_token_mlp__decode"
OUT = sys.argv[1] if len(sys.argv) > 1 else f"cdna_kernels/{NAME}.s"
STAMP = len(sys.argv) > 2 and sys.argv[2] == "stamp"

WS_QG = 0x0
WS_PG = 0x20000
PG_STRIDE = 258*16
WS_OG = 0x130000
WS_CNT = 0x170000
L_WOQ = 0
L_XN  = 114688
L_QL  = L_XN + 7168
L_CMB = L_QL + 1024
L_ML  = L_CMB + 16384
L_OL  = L_ML + 128
L_H   = L_OL + 4096
L_NON = L_H + 1792
L_ML2 = L_NON + 16
L_END = L_ML2 + 64

L = []
def e(s=""): L.append(s)
def lbl(s): L.append(s + ":")
C_SCALE = 0.0625 * 1.4426950408889634
def f2u(x): return struct.unpack("<I", struct.pack("<f", x))[0]
def hexf(x): return "0x%08x" % f2u(x)
DPPM = "row_mask:0xf bank_mask:0xf"
nstamp = [0]
def stamp():
    if STAMP:
        n = nstamp[0]; nstamp[0] += 1
        e(f"s_memrealtime s[{80+2*n}:{81+2*n}]")

def wave_allreduce(v, t1, t2, op="add"):
    ins = {"add": "v_add_f32", "max": "v_max_f32"}[op]
    for mod in ["quad_perm:[1,0,3,2]", "quad_perm:[2,3,0,1]", "row_half_mirror", "row_mirror"]:
        e("s_nop 1")
        e(f"{ins}_dpp v{v}, v{v}, v{v} {mod} {DPPM}")
    for sw in ["v_permlane16_swap_b32", "v_permlane32_swap_b32"]:
        e(f"v_mov_b32 v{t1}, v{v}")
        e(f"v_mov_b32 v{t2}, v{v}")
        e("s_nop 1")
        e(f"{sw} v{t1}, v{t2}")
        e("s_nop 1")
        e(f"{ins} v{v}, v{t1}, v{t2}")

def wave_allreduce2(v, w, t1, t2, t3, t4):
    e("s_nop 0")
    for mod in ["quad_perm:[1,0,3,2]", "quad_perm:[2,3,0,1]", "row_half_mirror", "row_mirror"]:
        e("s_nop 0")
        e(f"v_add_f32_dpp v{v}, v{v}, v{v} {mod} {DPPM}")
        e(f"v_add_f32_dpp v{w}, v{w}, v{w} {mod} {DPPM}")
    for sw in ["v_permlane16_swap_b32", "v_permlane32_swap_b32"]:
        e(f"v_mov_b32 v{t1}, v{v}")
        e(f"v_mov_b32 v{t2}, v{v}")
        e(f"v_mov_b32 v{t3}, v{w}")
        e(f"v_mov_b32 v{t4}, v{w}")
        e(f"{sw} v{t1}, v{t2}")
        e("s_nop 0")
        e(f"{sw} v{t3}, v{t4}")
        e("s_nop 0")
        e(f"v_add_f32 v{v}, v{t1}, v{t2}")
        e(f"v_add_f32 v{w}, v{t3}, v{t4}")

def srd(d, b, nbytes, off=0):
    if off:
        e(f"s_add_u32 s{d}, s{b}, {off}")
        e(f"s_addc_u32 s{d+1}, s{b+1}, 0")
        e(f"s_and_b32 s{d+1}, s{d+1}, 0xffff")
    else:
        e(f"s_mov_b32 s{d}, s{b}")
        e(f"s_and_b32 s{d+1}, s{b+1}, 0xffff")
    e(f"s_mov_b32 s{d+2}, {nbytes}")
    e(f"s_mov_b32 s{d+3}, 0x00020000")

def round_bf16(v, t):
    e(f"v_cvt_pk_bf16_f32 v{t}, v{v}, v{v}")
    e(f"v_lshlrev_b32 v{v}, 16, v{t}")

def round_bf16_list(xs, t):
    for i in range(0, len(xs)-1, 2):
        e(f"v_cvt_pk_bf16_f32 v{t}, v{xs[i]}, v{xs[i+1]}")
        e(f"v_lshlrev_b32 v{xs[i]}, 16, v{t}")
        e(f"v_and_b32 v{xs[i+1]}, 0xffff0000, v{t}")
    if len(xs) & 1:
        round_bf16(xs[-1], t)

def ln_finish_stats(s, m, a, d, n, eps):
    e(f"v_cvt_pk_bf16_f32 v{a}, v{m}, v{s}")
    e(f"v_lshlrev_b32 v{m}, 16, v{a}")
    e(f"v_and_b32 v{s}, 0xffff0000, v{a}")
    e(f"v_add_f32 v{s}, {hexf(eps)}, v{s}")
    round_bf16(s, a)
    e(f"v_sqrt_f32 v{s}, v{s}")
    e("s_nop 0")
    round_bf16(s, a)
    e(f"v_rcp_f32 v{d}, v{s}")
    e("s_nop 0")

def ln_apply(xs, m, d, a):
    for x in xs:
        e(f"v_sub_f32 v{x}, v{x}, v{m}")
    round_bf16_list(xs, a)
    for x in xs:
        e(f"v_mul_f32 v{x}, v{x}, v{d}")
    round_bf16_list(xs, a)

def layernorm_wave(xs, n, t, eps=1e-5):
    s, a, b, m, c, d = t, t+1, t+2, t+3, t+4, t+5
    e(f"v_add_f32 v{s}, v{xs[0]}, v{xs[1]}")
    for x in xs[2:]:
        e(f"v_add_f32 v{s}, v{s}, v{x}")
    wave_allreduce(s, a, b)
    e(f"v_mul_f32 v{m}, {hexf(1.0/n)}, v{s}")
    e(f"v_sub_f32 v{c}, v{xs[0]}, v{m}")
    e(f"v_mul_f32 v{s}, v{c}, v{c}")
    for x in xs[1:]:
        e(f"v_sub_f32 v{c}, v{x}, v{m}")
        e(f"v_fmac_f32 v{s}, v{c}, v{c}")
    wave_allreduce(s, a, b)
    e(f"v_mul_f32 v{s}, {hexf(1.0/n)}, v{s}")
    ln_finish_stats(s, m, a, d, n, eps)
    ln_apply(xs, m, d, a)

KB, VB, TB, OB = 32, 96, 160, 192
QB, SB, PB = 2, 10, 18
VM, VL, VMC, VKO, VVO, VT1, VT2, VT3, VBP, VT4 = 22, 23, 24, 25, 26, 27, 28, 29, 30, 31
import os
PSL = int(os.environ.get("PSL","4"))
KNT = os.environ.get("KNT"," nt")
VNT = os.environ.get("VNT"," nt")
S_WAVE, S_HKV, S_B, S_SPLIT, S_PAIR, S_BASE, S_CNT, S_SLO, S_SHI, S_C = 3, 60, 61, 62, 63, 64, 65, 66, 67, 68
S_N = 78
S_PB = 15
VAT, VZ = 31, 1+0
S_CO = 14

def loads_K():
    for i in range(8):
        for jj in range(2):
            r = KB + (i*2+jj)*4
            e(f"buffer_load_dwordx4 v[{r}:{r+3}], v{VKO}, s[32:35], s{S_BASE} offen offset:{i*512+jj*256}{KNT}")
def loads_V():
    for h in range(2):
        for i in range(8):
            r = VB + (h*8+i)*4
            e(f"buffer_load_dwordx4 v[{r}:{r+3}], v{VVO}, s[36:39], s{S_BASE} offen offset:{i*512+h*256}{VNT}")

def poll(tag, issue, gregs, sleep=4):
    lbl(f"{tag}_RETRY")
    issue()
    e("s_waitcnt vmcnt(0)")
    e("s_mov_b64 s[72:73], exec")
    for g in gregs:
        e(f"v_cmp_eq_u64 vcc, s[{S_N}:{S_N+1}], v[{g+2}:{g+3}]")
        e("s_and_b64 s[72:73], s[72:73], vcc")
    e("s_cmp_eq_u64 s[72:73], exec")
    e(f"s_cbranch_scc1 {tag}_OK")
    e(f"s_sleep {sleep}")
    e(f"s_branch {tag}_RETRY")
    lbl(f"{tag}_OK")

def gen():
    k = f"{NAME}_kernel"
    e(".text"); e(f".globl {k}"); e(".p2align 8"); e(f".type {k},@function"); lbl(k)
    stamp()
    e("s_cmp_ge_u32 s2, 256")
    e("s_cbranch_scc1 L_END")
    e("s_load_dwordx8 s[4:11], s[0:1], 0")
    e("s_load_dwordx2 s[12:13], s[0:1], 32")
    e("s_load_dwordx8 s[16:23], s[0:1], 48")
    e("s_load_dwordx4 s[24:27], s[0:1], 80")
    e("s_load_dwordx2 s[28:29], s[0:1], 96")
    e("s_memrealtime s[74:75]")
    e(f"v_lshrrev_b32 v{VT4}, 6, v0")
    e("v_and_b32 v1, 63, v0")
    e(f"v_readfirstlane_b32 s{S_WAVE}, v{VT4}")
    e(f"s_lshr_b32 s{S_PAIR}, s2, 2")
    e(f"s_and_b32 s{S_SPLIT}, s2, 3")
    e(f"s_and_b32 s{S_HKV}, s{S_PAIR}, 7")
    e(f"s_lshr_b32 s{S_B}, s{S_PAIR}, 3")
    e(f"s_mov_b32 s{S_SLO}, 0x05040100")
    e(f"s_mov_b32 s{S_SHI}, 0x07060302")
    e(f"s_mov_b32 s{S_C}, {hexf(C_SCALE)}")
    e(f"s_lshl_b32 s{S_PB}, s{S_PAIR}, 22")
    e(f"s_lshl_b32 s69, s{S_SPLIT}, 17")
    e(f"s_add_u32 s{S_BASE}, s{S_PB}, s69")
    e(f"s_lshl_b32 s69, s{S_WAVE}, 14")
    e(f"s_add_u32 s{S_BASE}, s{S_BASE}, s69")
    e(f"v_and_b32 v{VT1}, 15, v1")
    e(f"v_lshrrev_b32 v{VT2}, 4, v1")
    e(f"v_lshrrev_b32 v{VT3}, 2, v{VT1}")
    e(f"v_lshlrev_b32 v{VKO}, 12, v{VT3}")
    e(f"v_lshl_add_u32 v{VKO}, v{VT2}, 6, v{VKO}")
    e(f"v_and_b32 v{VT3}, 3, v{VT1}")
    e(f"v_lshl_add_u32 v{VKO}, v{VT3}, 4, v{VKO}")
    e(f"v_lshlrev_b32 v{VVO}, 12, v{VT2}")
    e(f"v_lshl_add_u32 v{VVO}, v{VT1}, 4, v{VVO}")
    e(f"v_lshlrev_b32 v{VBP}, 4, v{VT2}")
    e("s_waitcnt lgkmcnt(0)")
    srd(32, 6, 0x10000000)
    srd(36, 8, 0x10000000)
    srd(40, 4, 8*448*2)
    srd(44, 10, 448*4096*2)
    srd(48, 26, 256)
    e(f"s_mul_i32 s69, s{S_WAVE}, 896")
    e(f"v_lshlrev_b32 v{VT3}, 1, v1")
    xs = list(range(10, 17))
    for i in range(7):
        e(f"buffer_load_ushort v{xs[i]}, v{VT3}, s[40:43], s69 offen offset:{i*128}")
    e(f"s_lshl_b32 s70, s{S_SPLIT}, 3")
    e(f"s_add_u32 s77, s70, s{S_B}")
    e(f"s_cmp_eq_u32 s{S_WAVE}, 7")
    e("s_cbranch_scc1 L_NONCE")
    e(f"v_lshrrev_b32 v{VT4}, 3, v1")
    e(f"v_lshlrev_b32 v{VT4}, 16, v{VT4}")
    e(f"v_and_b32 v{VT3}, 7, v1")
    e(f"v_lshl_add_u32 v{VT4}, v{VT3}, 2, v{VT4}")
    e("s_lshl_b32 s70, s77, 5")
    e(f"s_lshl_b32 s71, s{S_HKV}, 10")
    e("s_add_u32 s70, s70, s71")
    e(f"s_lshl_b32 s71, s{S_WAVE}, 19")
    e("s_add_u32 s71, s71, s70")
    for i in range(8):
        e(f"buffer_load_dword v{160+i}, v{VT4}, s[44:47], s71 offen")
        e("s_add_u32 s71, s71, 8192")
    e("s_waitcnt vmcnt(8)")
    e("s_branch L_LN")
    lbl("L_NONCE")
    e("s_or_b32 s74, s74, 1")
    e("v_mov_b32 v160, s74")
    e("v_mov_b32 v161, s75")
    e("v_mov_b32 v162, 0")
    e("v_mov_b32 v163, 0")
    e("v_mov_b32 v164, 0")
    e("s_cmp_ge_u32 s2, 8")
    e("s_cbranch_scc1 L_NOCAS")
    e("s_mov_b64 exec, 1")
    e("buffer_atomic_cmpswap_x2 v[160:163], v164, s[48:51], 0 offen")
    e("s_mov_b64 exec, -1")
    e("s_waitcnt vmcnt(1)")
    e("s_branch L_LN")
    lbl("L_NOCAS")
    e("s_waitcnt vmcnt(0)")
    lbl("L_LN")
    stamp()
    for x in xs:
        e(f"v_lshlrev_b32 v{x}, 16, v{x}")
    layernorm_wave(xs, 448, 2)
    e(f"v_lshlrev_b32 v{VT3}, 1, v1")
    e(f"s_add_u32 s69, s69, {L_XN}")
    e(f"v_add_u32 v{VT3}, s69, v{VT3}")
    for i, x in enumerate(xs):
        e(f"v_lshrrev_b32 v{x}, 16, v{x}")
        e(f"ds_write_b16 v{VT3}, v{x} offset:{i*128}")
    e(f"v_and_b32 v{VT3}, 7, v1")
    e(f"v_mul_u32_u24 v{VT3}, 896, v{VT3}")
    e(f"v_lshrrev_b32 v{VT4}, 3, v1")
    e(f"v_lshl_add_u32 v{VT3}, v{VT4}, 4, v{VT3}")
    e(f"s_lshl_b32 s69, s{S_WAVE}, 7")
    e(f"s_add_u32 s69, s69, {L_XN}")
    e(f"v_add_u32 v{VT3}, s69, v{VT3}")
    e("s_waitcnt lgkmcnt(0)")
    e("s_barrier")
    e(f"s_cmp_eq_u32 s{S_WAVE}, 7")
    e("s_cbranch_scc1 L_NONCE2")
    e(f"ds_read_b128 v[2:5], v{VT3}")
    e("s_waitcnt vmcnt(0)")
    for p in range(4):
        e(f"v_perm_b32 v{168+p}, v{161+2*p}, v{160+2*p}, s{S_SLO}")
        e(f"v_perm_b32 v{172+p}, v{161+2*p}, v{160+2*p}, s{S_SHI}")
    e(f"v_lshrrev_b32 v{VT3}, 4, v1")
    e(f"v_lshlrev_b32 v{VT3}, 8, v{VT3}")
    e(f"v_and_b32 v{VT4}, 7, v1")
    e(f"v_lshl_add_u32 v{VT3}, v{VT4}, 3, v{VT3}")
    e(f"s_lshl_b32 s69, s{S_WAVE}, 10")
    e(f"s_add_u32 s69, s69, {L_CMB}")
    e(f"v_add_u32 v{VT3}, s69, v{VT3}")
    e(f"v_lshrrev_b32 v{VT4}, 5, v1")
    e(f"v_bfe_u32 v6, v1, 3, 1")
    e(f"v_cmp_eq_u32 vcc, v{VT4}, v6")
    e("s_waitcnt lgkmcnt(0)")
    e("v_mfma_f32_16x16x32_bf16 v[176:179], v[2:5], v[168:171], 0")
    e("v_mfma_f32_16x16x32_bf16 v[180:183], v[2:5], v[172:175], 0")
    e("s_and_saveexec_b64 s[72:73], vcc")
    e("s_nop 7")
    for r in range(4):
        e(f"v_mov_b32 v6, v{176+r}")
        e(f"v_mov_b32 v7, v{180+r}")
        e(f"ds_write_b64 v{VT3}, v[6:7] offset:{r*64}")
    e("s_mov_b64 exec, s[72:73]")
    e("s_branch L_QRED")
    lbl("L_NONCE2")
    e("buffer_load_dwordx2 v[2:3], v164, s[48:51], 0 offen sc1")
    e("s_waitcnt vmcnt(0)")
    e("v_readfirstlane_b32 s70, v2")
    e("v_readfirstlane_b32 s71, v3")
    e("s_cmp_eq_u64 s[70:71], 0")
    e("s_cbranch_scc1 L_NONCE2")
    e(f"v_mov_b32 v4, {L_NON}")
    e("ds_write_b64 v4, v[2:3]")
    lbl("L_QRED")
    e("s_waitcnt lgkmcnt(0)")
    e("s_barrier")
    stamp()
    e(f"v_mov_b32 v4, {L_NON}")
    e("ds_read_b64 v[2:3], v4")
    e("s_waitcnt lgkmcnt(0)")
    e(f"v_readfirstlane_b32 s{S_N}, v2")
    e(f"v_readfirstlane_b32 s{S_N+1}, v3")
    e(f"s_cmp_lg_u32 s{S_WAVE}, 0")
    e("s_cbranch_scc1 L_JOIN")
    e(f"v_lshlrev_b32 v{VT3}, 3, v1")
    e(f"v_add_u32 v{VT3}, {L_CMB}, v{VT3}")
    for i in range(14):
        e(f"ds_read_b64 v[{32+2*i}:{33+2*i}], v{VT3} offset:{i*512}")
    srd(40, 28, 64*128*16, WS_QG)
    e(f"v_lshrrev_b32 v{VT3}, 3, v1")
    e(f"v_lshlrev_b32 v{VT3}, 14, v{VT3}")
    e(f"v_and_b32 v{VT4}, 7, v1")
    e(f"v_lshl_add_u32 v{VT3}, v{VT4}, 3, v{VT3}")
    e(f"s_lshl_b32 s69, s{S_HKV}, 11")
    e("s_lshl_b32 s70, s77, 6")
    e("s_add_u32 s69, s69, s70")
    e(f"v_mov_b32 v14, s{S_N}")
    e(f"v_mov_b32 v15, s{S_N+1}")
    e(f"s_cmp_lg_u32 s{S_SPLIT}, 0")
    e("s_cbranch_scc1 L_NOINIT")
    srd(44, 28, 64*256, WS_CNT)
    e(f"s_lshl_b32 s70, s{S_PAIR}, 8")
    e("v_mov_b32 v12, 32")
    e("v_mov_b32 v13, 0")
    e("s_mov_b64 exec, 1")
    e("buffer_store_dword v12, v13, s[44:47], s70 offen sc1")
    e("s_mov_b64 exec, -1")
    e("s_waitcnt vmcnt(0)")
    lbl("L_NOINIT")
    e("s_waitcnt lgkmcnt(0)")
    for i in range(1, 14):
        e(f"v_add_f32 v32, v32, v{32+2*i}")
        e(f"v_add_f32 v33, v33, v{33+2*i}")
    e("v_cvt_pk_bf16_f32 v12, v32, v33")
    e("s_nop 1")
    e(f"v_mov_b32_dpp v13, v12 quad_perm:[1,0,3,2] {DPPM}")
    e("s_mov_b32 exec_lo, 0x55555555")
    e("s_mov_b32 exec_hi, 0x55555555")
    e(f"buffer_store_dwordx4 v[12:15], v{VT3}, s[40:43], s69 offen sc1")
    e("s_mov_b64 exec, -1")
    stamp()
    e(f"v_lshlrev_b32 v{VT3}, 4, v1")
    e(f"s_lshl_b32 s69, s{S_PAIR}, 11")
    def iss():
        e(f"buffer_load_dwordx4 v[32:35], v{VT3}, s[40:43], s69 offen sc1")
        e(f"buffer_load_dwordx4 v[36:39], v{VT3}, s[40:43], s69 offen offset:1024 sc1")
    poll("L_H0", iss, [32, 36], sleep=2)
    stamp()
    e(f"v_lshlrev_b32 v{VT3}, 3, v1")
    e(f"v_add_u32 v{VT3}, {L_QL}, v{VT3}")
    e(f"ds_write_b64 v{VT3}, v[32:33]")
    e(f"ds_write_b64 v{VT3}, v[36:37] offset:512")
    e("s_waitcnt lgkmcnt(0)")
    lbl("L_JOIN")
    e("s_barrier")
    stamp()
    e(f"v_and_b32 v{VT1}, 15, v1")
    e(f"v_lshrrev_b32 v{VT2}, 4, v1")
    e(f"v_and_b32 v{VT3}, 7, v{VT1}")
    e(f"v_lshrrev_b32 v{VT4}, 2, v{VT3}")
    e(f"v_lshlrev_b32 v{VT4}, 9, v{VT4}")
    e(f"v_lshl_add_u32 v{VT4}, v{VT2}, 6, v{VT4}")
    e(f"v_and_b32 v{VT3}, 3, v{VT1}")
    e(f"v_lshl_add_u32 v{VT4}, v{VT3}, 4, v{VT4}")
    e(f"v_add_u32 v{VT4}, {L_QL}, v{VT4}")
    e(f"ds_read_b128 v[{QB}:{QB+3}], v{VT4}")
    e(f"ds_read_b128 v[{QB+4}:{QB+7}], v{VT4} offset:256")
    srd(8, 28, 64*256, WS_CNT)
    e(f"s_lshl_b32 s{S_CO}, s{S_PAIR}, 8")
    loads_K()
    e(f"v_mov_b32 v{VAT}, 1")
    e("s_mov_b64 exec, 1")
    e(f"buffer_atomic_add v{VAT}, v{VZ}, s[8:11], s{S_CO} offen sc0")
    e("s_mov_b64 exec, -1")
    loads_V()
    e(f"s_cmp_lt_u32 s{S_WAVE}, 4")
    e("s_cbranch_scc1 L_NODMA")
    srd(40, 12, 4096*448*2)
    e(f"v_mul_u32_u24 v{VT3}, 4682, v1")
    e(f"v_lshrrev_b32 v{VT3}, 16, v{VT3}")
    e(f"v_mul_u32_u24 v{VT2}, 672, v{VT3}")
    e(f"v_lshl_add_u32 v{VT2}, v1, 4, v{VT2}")
    e(f"s_sub_u32 s69, s{S_WAVE}, 4")
    e("s_mul_i32 s70, s69, 28672")
    e(f"s_lshl_b32 s71, s{S_HKV}, 2")
    e("s_add_u32 s71, s71, s69")
    e("s_mul_i32 s71, s71, 114688")
    e(f"s_mul_i32 s72, s{S_SPLIT}, 224")
    e("s_add_u32 s71, s71, s72")
    e("s_mov_b32 s72, 0")
    e("s_mov_b32 exec_hi, 0x00ffffff")
    lbl("L_WODMA")
    e("s_mov_b32 m0, s70")
    e("s_add_u32 s70, s70, 896")
    e(f"buffer_load_dwordx4 v{VT2}, s[40:43], s71 offen lds")
    e("s_add_u32 s71, s71, 3584")
    e("s_add_u32 s72, s72, 1")
    e("s_cmp_lt_u32 s72, 32")
    e("s_cbranch_scc1 L_WODMA")
    e("s_mov_b64 exec, -1")
    lbl("L_NODMA")
    for r in range(64):
        e(f"v_mov_b32 v{OB+r}, 0")
    e(f"v_mov_b32 v{VM}, 0xff7fffff")
    e(f"v_mov_b32 v{VL}, 0")
    e(f"v_mov_b32 v{VMC}, 0")
    e(f"v_cmp_gt_u32 vcc, 8, v{VT1}")
    e("s_waitcnt lgkmcnt(0)")
    e("s_nop 0")
    for r in range(8):
        e(f"v_cndmask_b32 v{QB+r}, 0, v{QB+r}, vcc")
    e(f"s_mov_b32 s{S_CNT}, 0")
    srd(40, 16, 3584)
    srd(44, 18, 3584)
    srd(48, 20, 3584)
    srd(52, 22, 2)
    srd(56, 4, 8*448*2)
    lbl("L_LOOP")
    e("s_waitcnt vmcnt(17)")
    for jj in range(2):
        for i in range(8):
            d = TB + i*4
            kk = KB + (i*2+jj)*4
            c = "0" if jj == 0 else f"v[{d}:{d+3}]"
            e(f"v_mfma_f32_16x16x32_bf16 v[{d}:{d+3}], v[{kk}:{kk+3}], v[{QB+jj*4}:{QB+jj*4+3}], {c}")
    e("s_waitcnt vmcnt(16)")
    e(f"v_readfirstlane_b32 s69, v{VAT}")
    e("s_cmp_ge_u32 s69, 256")
    e("s_cbranch_scc1 L_LASTK")
    e("s_lshl_b32 s69, s69, 14")
    e(f"s_add_u32 s{S_BASE}, s{S_PB}, s69")
    loads_K()
    e(f"v_mov_b32 v{VAT}, 1")
    e("s_mov_b64 exec, 1")
    e(f"buffer_atomic_add v{VAT}, v{VZ}, s[8:11], s{S_CO} offen sc0")
    e("s_mov_b64 exec, -1")
    e("s_branch L_AFTK")
    lbl("L_LASTK")
    e(f"s_mov_b32 s{S_CNT}, 1")
    e(f"v_mul_u32_u24 v{VT1}, 56, v1")
    for base, sr in [(32, 40), (46, 44), (60, 48)]:
        for i in range(7):
            e(f"buffer_load_dwordx2 v[{base+2*i}:{base+2*i+1}], v{VT1}, s[{sr}:{sr+3}], 0 offen offset:{i*8}")
    e(f"v_lshlrev_b32 v{VT1}, 1, v0")
    e(f"s_mul_i32 s69, s{S_B}, 896")
    e(f"buffer_load_ushort v74, v{VT1}, s[56:59], s69 offen")
    e(f"v_mov_b32 v{VT1}, 0")
    e(f"buffer_load_ushort v75, v{VT1}, s[52:55], 0 offen")
    lbl("L_AFTK")
    for i in range(8):
        d = TB + i*4
        e(f"v_mov_b32_dpp v{SB+i}, v{d} quad_perm:[0,0,0,0] {DPPM}")
        e(f"v_add_f32_dpp v{SB+i}, v{d+1}, v{SB+i} quad_perm:[1,1,1,1] {DPPM}")
        e(f"v_add_f32_dpp v{SB+i}, v{d+2}, v{SB+i} quad_perm:[2,2,2,2] {DPPM}")
        e(f"v_add_f32_dpp v{SB+i}, v{d+3}, v{SB+i} quad_perm:[3,3,3,3] {DPPM}")
    for i in range(0, 8, 2):
        e(f"v_cvt_pk_bf16_f32 v{VT1}, v{SB+i}, v{SB+i+1}")
        e(f"v_lshlrev_b32 v{SB+i}, 16, v{VT1}")
        e(f"v_and_b32 v{SB+i+1}, 0xffff0000, v{VT1}")
    e(f"v_max3_f32 v{VT1}, v{SB}, v{SB+1}, v{SB+2}")
    e(f"v_max3_f32 v{VT1}, v{VT1}, v{SB+3}, v{SB+4}")
    e(f"v_max3_f32 v{VT1}, v{VT1}, v{SB+5}, v{SB+6}")
    e(f"v_max_f32 v{VT1}, v{VT1}, v{SB+7}")
    e(f"v_cmp_gt_f32 vcc, v{VT1}, v{VM}")
    e("s_cbranch_vccz L_FAST")
    for sw in ["v_permlane16_swap_b32", "v_permlane32_swap_b32"]:
        e(f"v_mov_b32 v{VT2}, v{VT1}")
        e(f"v_mov_b32 v{VT3}, v{VT1}")
        e("s_nop 1")
        e(f"{sw} v{VT2}, v{VT3}")
        e("s_nop 1")
        e(f"v_max_f32 v{VT1}, v{VT2}, v{VT3}")
    e(f"v_max_f32 v{VT1}, v{VT1}, v{VM}")
    e(f"v_sub_f32 v{VT2}, v{VM}, v{VT1}")
    e(f"v_mul_f32 v{VT2}, s{S_C}, v{VT2}")
    e(f"v_exp_f32 v{VT2}, v{VT2}")
    e(f"v_mov_b32 v{VM}, v{VT1}")
    e(f"v_mul_f32 v{VMC}, s{S_C}, v{VT1}")
    e(f"v_mul_f32 v{VL}, v{VL}, v{VT2}")
    e(f"ds_bpermute_b32 v{VT3}, v{VBP}, v{VT2}")
    e("s_waitcnt lgkmcnt(0)")
    for r in range(64):
        e(f"v_mul_f32 v{OB+r}, v{OB+r}, v{VT3}")
    lbl("L_FAST")
    for i in range(8):
        e(f"v_fma_f32 v{SB+i}, v{SB+i}, s{S_C}, -v{VMC}")
    for i in range(8):
        e(f"v_exp_f32 v{SB+i}, v{SB+i}")
    e("s_nop 0")
    for i in range(0, 8, 2):
        e(f"v_cvt_pk_bf16_f32 v{PB+i//2}, v{SB+i}, v{SB+i+1}")
    e(f"v_add_f32 v{VT1}, v{SB}, v{SB+1}")
    e(f"v_add_f32 v{VT2}, v{SB+2}, v{SB+3}")
    e(f"v_add_f32 v{VT3}, v{SB+4}, v{SB+5}")
    e(f"v_add_f32 v{VT1}, v{VT1}, v{VT2}")
    e(f"v_add_f32 v{VT2}, v{SB+6}, v{SB+7}")
    e(f"v_add_f32 v{VT3}, v{VT3}, v{VT2}")
    e(f"v_add_f32 v{VT1}, v{VT1}, v{VT3}")
    e(f"v_add_f32 v{VL}, v{VL}, v{VT1}")
    e(f"s_cmp_eq_u32 s{S_CNT}, 1")
    e("s_cbranch_scc0 L_W16")
    e("s_waitcnt vmcnt(0)")
    lbl("L_W16")
    e("s_waitcnt vmcnt(17)")
    for h in range(2):
        for w in range(4):
            for p in range(4):
                a = VB + (h*8+2*p)*4 + w
                b = VB + (h*8+2*p+1)*4 + w
                e(f"v_perm_b32 v{TB+(2*w)*4+p}, v{b}, v{a}, s{S_SLO}")
                e(f"v_perm_b32 v{TB+(2*w+1)*4+p}, v{b}, v{a}, s{S_SHI}")
        if h == 1:
            e(f"s_cmp_eq_u32 s{S_CNT}, 1")
            e("s_cbranch_scc1 L_SKIPV")
            loads_V()
            lbl("L_SKIPV")
        e("s_nop 1")
        for j in range(8):
            o = OB + (h*8+j)*4
            e(f"v_mfma_f32_16x16x32_bf16 v[{o}:{o+3}], v[{PB}:{PB+3}], v[{TB+j*4}:{TB+j*4+3}], v[{o}:{o+3}]")
    e(f"s_cmp_eq_u32 s{S_CNT}, 0")
    e("s_cbranch_scc1 L_LOOP")
    stamp()
    if STAMP:
        e("s_waitcnt lgkmcnt(0)")
        srd(56, 28, 65536, 0x210000)
        e("s_lshl_b32 s69, s2, 3")
        e(f"s_add_u32 s69, s69, s{S_WAVE}")
        e("s_lshl_b32 s69, s69, 2")
        e(f"v_mov_b32 v{VT1}, s{80+2*(nstamp[0]-1)}")
        e(f"v_mov_b32 v{VT2}, 0")
        e(f"buffer_store_dword v{VT1}, v{VT2}, s[56:59], s69 offen")
    for sw in ["v_permlane16_swap_b32", "v_permlane32_swap_b32"]:
        e(f"v_mov_b32 v{VT2}, v{VL}")
        e(f"v_mov_b32 v{VT3}, v{VL}")
        e("s_nop 1")
        e(f"{sw} v{VT2}, v{VT3}")
        e("s_nop 1")
        e(f"v_add_f32 v{VL}, v{VT2}, v{VT3}")
    e(f"v_and_b32 v{VT1}, 15, v1")
    e(f"v_lshrrev_b32 v{VT2}, 4, v1")
    e(f"v_lshlrev_b32 v{VT3}, 10, v{VT2}")
    e(f"v_lshl_add_u32 v{VT3}, v{VT1}, 5, v{VT3}")
    e(f"s_lshl_b32 s69, s{S_WAVE}, 11")
    e(f"s_add_u32 s69, s69, {L_CMB}")
    e(f"v_add_u32 v{VT3}, s69, v{VT3}")
    e("v_cmp_gt_u32 vcc, 32, v1")
    e("s_and_saveexec_b64 s[72:73], vcc")
    for h in range(2):
        for j in range(8):
            e(f"ds_write_b32 v{VT3}, v{OB+(h*8+j)*4} offset:{(h*128+j)*4}")
    e("s_mov_b64 exec, s[72:73]")
    e(f"v_lshlrev_b32 v{VT3}, 1, v1")
    e(f"s_lshl_b32 s69, s{S_WAVE}, 4")
    e(f"s_add_u32 s69, s69, {L_ML}")
    e(f"v_add_u32 v{VT3}, s69, v{VT3}")
    e(f"v_and_b32 v{VT1}, 0xfb, v1")
    e(f"v_cmp_eq_u32 vcc, 0, v{VT1}")
    e("s_and_saveexec_b64 s[72:73], vcc")
    e(f"ds_write_b64 v{VT3}, v[{VM}:{VM+1}]")
    e("s_mov_b64 exec, s[72:73]")
    srd(40, 28, 256*PG_STRIDE, WS_PG)
    srd(52, 28, 64*3584, WS_OG)
    e("v_lshrrev_b32 v2, 8, v0")
    e("v_lshlrev_b32 v3, 3, v2")
    e(f"v_add_u32 v3, {L_ML}, v3")
    e("v_lshlrev_b32 v4, 2, v0")
    e(f"v_add_u32 v5, {L_CMB}, v4")
    e("v_and_b32 v9, 0xfffffffe, v0")
    e("v_lshlrev_b32 v9, 3, v9")
    e(f"v_mov_b32 v14, s{S_N}")
    e(f"v_mov_b32 v15, s{S_N+1}")
    e(f"v_mov_b32 v18, s{S_N}")
    e(f"v_mov_b32 v19, s{S_N+1}")
    e("s_waitcnt lgkmcnt(0)")
    e("s_barrier")
    for w in range(8):
        e(f"ds_read_b64 v[{96+2*w}:{97+2*w}], v3 offset:{w*16}")
    for w in range(8):
        e(f"ds_read_b32 v{112+w}, v5 offset:{w*2048}")
    e(f"s_lshl_b32 s69, s{S_PAIR}, 2")
    e(f"s_add_u32 s69, s69, s{S_SPLIT}")
    e(f"s_mul_i32 s69, s69, {PG_STRIDE}")
    e("v_lshlrev_b32 v8, 4, v2")
    e("v_add_u32 v8, 4096, v8")
    e("s_waitcnt lgkmcnt(0)")
    e("v_max3_f32 v16, v96, v98, v100")
    e("v_max3_f32 v16, v16, v102, v104")
    e("v_max3_f32 v16, v16, v106, v108")
    e("v_max_f32 v16, v16, v110")
    for w in range(8):
        e(f"v_sub_f32 v{96+2*w}, v{96+2*w}, v16")
        e(f"v_mul_f32 v{96+2*w}, s{S_C}, v{96+2*w}")
        e(f"v_exp_f32 v{96+2*w}, v{96+2*w}")
    e("s_nop 0")
    e("v_mul_f32 v17, v96, v97")
    e("v_mul_f32 v12, v96, v112")
    for w in range(1, 8):
        e(f"v_fmac_f32 v17, v{96+2*w}, v{97+2*w}")
        e(f"v_fmac_f32 v12, v{96+2*w}, v{112+w}")
    e("s_nop 1")
    e(f"v_mov_b32_dpp v13, v12 quad_perm:[1,0,3,2] {DPPM}")
    e("s_mov_b32 exec_lo, 0x55555555")
    e("s_mov_b32 exec_hi, 0x55555555")
    e("buffer_store_dwordx4 v[12:15], v9, s[40:43], s69 offen sc1")
    e("s_mov_b64 exec, -1")
    e("v_and_b32 v6, 255, v0")
    e("v_cmp_eq_u32 vcc, 0, v6")
    e("s_and_saveexec_b64 s[72:73], vcc")
    e("buffer_store_dwordx4 v[16:19], v8, s[40:43], s69 offen sc1")
    e("s_mov_b64 exec, s[72:73]")
    e("v_lshrrev_b32 v12, 4, v1")
    e("v_bfe_u32 v13, v1, 2, 2")
    e("v_lshl_add_u32 v13, v12, 3, v13")
    e("v_mul_u32_u24 v20, 224, v13")
    e("v_and_b32 v13, 3, v1")
    e("v_lshl_add_u32 v20, v13, 3, v20")
    e(f"s_mul_i32 s70, s{S_WAVE}, {64*224}")
    e("v_add_u32 v20, s70, v20")
    e("v_lshlrev_b32 v21, 4, v12")
    e(f"s_lshl_b32 s70, s{S_WAVE}, 7")
    e(f"s_add_u32 s70, s70, {L_OL}")
    e("v_add_u32 v21, s70, v21")
    e("v_lshlrev_b32 v22, 2, v1")
    e(f"s_mul_i32 s70, s{S_WAVE}, 448")
    e(f"s_add_u32 s70, s70, {L_CMB}")
    e("v_add_u32 v22, s70, v22")
    e("v_lshlrev_b32 v6, 1, v0")
    e(f"v_add_u32 v6, {L_OL}, v6")
    for (src, dst) in [(32, 128), (46, 156), (60, 184)]:
        for i in range(14):
            e(f"v_lshlrev_b32 v{dst+2*i}, 16, v{src+i}")
            e(f"v_and_b32 v{dst+2*i+1}, 0xffff0000, v{src+i}")
    e(f"s_mul_i32 s69, s{S_PAIR}, {4*PG_STRIDE}")
    e(f"s_cmp_lg_u32 s{S_WAVE}, 0")
    e("s_cbranch_scc1 L_H1_DONE")
    e("v_lshrrev_b32 v10, 1, v1")
    e(f"v_mul_u32_u24 v10, {PG_STRIDE}, v10")
    e("v_and_b32 v11, 1, v1")
    e("v_lshl_add_u32 v10, v11, 4, v10")
    e("v_add_u32 v10, 4096, v10")
    e("v_lshlrev_b32 v11, 3, v1")
    e(f"v_add_u32 v11, {L_ML2}, v11")
    e("s_mov_b64 exec, 0xff")
    poll("L_H1", lambda: e("buffer_load_dwordx4 v[96:99], v10, s[40:43], s69 offen sc1"), [96], sleep=PSL)
    e("ds_write_b64 v11, v[96:97]")
    e("s_mov_b64 exec, -1")
    e("s_waitcnt lgkmcnt(0)")
    lbl("L_H1_DONE")
    e("s_barrier")
    stamp()
    e("v_lshlrev_b32 v3, 3, v2")
    e(f"v_add_u32 v3, {L_ML2}, v3")
    for s in range(4):
        e(f"ds_read_b64 v[{112+2*s}:{113+2*s}], v3 offset:{s*16}")
    def iss2():
        e("s_mov_b32 s70, s69")
        for s in range(4):
            e(f"buffer_load_dwordx4 v[{96+4*s}:{99+4*s}], v9, s[40:43], s70 offen sc1")
            e(f"s_add_u32 s70, s70, {PG_STRIDE}")
    poll("L_T2", iss2, [96, 100, 104, 108], sleep=1)
    e("v_and_b32 v7, 1, v0")
    e("v_cmp_eq_u32 vcc, 1, v7")
    e("s_waitcnt lgkmcnt(0)")
    e("s_nop 0")
    for s in range(4):
        e(f"v_cndmask_b32 v{96+4*s}, v{96+4*s}, v{97+4*s}, vcc")
    e("v_max3_f32 v10, v112, v114, v116")
    e("v_max_f32 v10, v10, v118")
    for s in range(4):
        e(f"v_sub_f32 v{112+2*s}, v{112+2*s}, v10")
        e(f"v_mul_f32 v{112+2*s}, s{S_C}, v{112+2*s}")
        e(f"v_exp_f32 v{112+2*s}, v{112+2*s}")
    e("s_nop 0")
    e("v_mul_f32 v11, v112, v113")
    e("v_mul_f32 v7, v112, v96")
    for s in range(1, 4):
        e(f"v_fmac_f32 v11, v{112+2*s}, v{113+2*s}")
        e(f"v_fmac_f32 v7, v{112+2*s}, v{96+4*s}")
    e("v_rcp_f32 v10, v11")
    e("s_nop 0")
    e("v_mul_f32 v8, v7, v10")
    e("v_fma_f32 v7, -v8, v11, v7")
    e("v_fma_f32 v8, v7, v10, v8")
    e("v_cvt_pk_bf16_f32 v8, v8, v8")
    e("ds_write_b16 v6, v8")
    e("s_waitcnt lgkmcnt(0)")
    e("s_barrier")
    e("ds_read_b128 v[96:99], v21")
    e("ds_read_b128 v[100:103], v21 offset:64")
    for st in range(2):
        for cg in range(7):
            r = 212 + ((st*7+cg) % 11)*4 if False else None
    frag = [212+4*i for i in range(11)] + [104, 108, 112]
    for st in range(2):
        for cg in range(7):
            f = frag[st*7+cg]
            e(f"ds_read_b64_tr_b16 v[{f}:{f+1}], v20 offset:{st*32*224 + cg*32}")
            e(f"ds_read_b64_tr_b16 v[{f+2}:{f+3}], v20 offset:{st*32*224 + 4*224 + cg*32}")
    e("s_waitcnt lgkmcnt(0)")
    acc = [32+4*i for i in range(7)]
    for cg in range(7):
        f = frag[cg]
        e(f"v_mfma_f32_16x16x32_bf16 v[{acc[cg]}:{acc[cg]+3}], v[96:99], v[{f}:{f+3}], 0")
    for cg in range(7):
        f = frag[7+cg]
        e(f"v_mfma_f32_16x16x32_bf16 v[{acc[cg]}:{acc[cg]+3}], v[100:103], v[{f}:{f+3}], v[{acc[cg]}:{acc[cg]+3}]")
    e("s_mov_b64 exec, 0xffff")
    e("s_nop 7")
    for cg in range(7):
        e(f"ds_write_b32 v22, v{acc[cg]} offset:{cg*64}")
    e("s_mov_b64 exec, -1")
    e("s_waitcnt lgkmcnt(0)")
    e("s_barrier")
    e(f"s_mul_i32 s69, s{S_B}, {8*3584}")
    e(f"s_cmp_ge_u32 s{S_WAVE}, 2")
    e("s_cbranch_scc1 L_T3B")
    for ks in range(8):
        e(f"ds_read_b32 v{96+ks}, v5 offset:{ks*448}")
    e(f"s_mul_i32 s70, s{S_HKV}, 3584")
    e(f"s_mul_i32 s71, s{S_SPLIT}, 896")
    e("s_add_u32 s70, s70, s71")
    e("s_add_u32 s70, s70, s69")
    e("v_cmp_gt_u32 vcc, 112, v0")
    e("s_and_b32 vcc_lo, vcc_lo, 0x55555555")
    e("s_and_b32 vcc_hi, vcc_hi, 0x55555555")
    e("s_waitcnt lgkmcnt(0)")
    for st in [4, 2]:
        for i in range(st):
            e(f"v_add_f32 v{96+i}, v{96+i}, v{96+st+i}")
    e("v_add_f32 v12, v96, v97")
    e("s_nop 1")
    e(f"v_mov_b32_dpp v13, v12 quad_perm:[1,0,3,2] {DPPM}")
    e("s_and_saveexec_b64 s[72:73], vcc")
    e("buffer_store_dwordx4 v[12:15], v9, s[52:55], s70 offen sc1")
    e("s_mov_b64 exec, s[72:73]")
    lbl("L_T3B")
    e(f"s_cmp_lg_u32 s{S_WAVE}, 0")
    e("s_cbranch_scc1 L_H2_DONE")
    e("v_mul_u32_u24 v10, 896, v1")
    e("v_add_u32 v10, 880, v10")
    e("s_mov_b32 exec_hi, 0")
    poll("L_H2", lambda: e("buffer_load_dwordx4 v[96:99], v10, s[52:55], s69 offen sc1"), [96], sleep=PSL)
    e("s_mov_b64 exec, -1")
    lbl("L_H2_DONE")
    e("s_barrier")
    stamp()
    e(f"s_cmp_eq_u32 s{S_WAVE}, 7")
    e("s_cbranch_scc1 L_T4SKIP")
    def iss4():
        e("s_mov_b32 s70, s69")
        for p in range(8):
            e(f"buffer_load_dwordx4 v[{96+4*p}:{99+4*p}], v9, s[52:55], s70 offen sc1")
            e("s_add_u32 s70, s70, 3584")
    poll("L_T4", iss4, [96+4*p for p in range(8)], sleep=1)
    e("v_and_b32 v7, 1, v0")
    e("v_cmp_eq_u32 vcc, 1, v7")
    e(f"v_add_u32 v5, {L_H}, v4")
    e("s_nop 0")
    for p in range(8):
        e(f"v_cndmask_b32 v{96+4*p}, v{96+4*p}, v{97+4*p}, vcc")
    e("v_add_f32 v96, v96, v100")
    e("v_add_f32 v104, v104, v108")
    e("v_add_f32 v112, v112, v116")
    e("v_add_f32 v120, v120, v124")
    e("v_add_f32 v96, v96, v104")
    e("v_add_f32 v112, v112, v120")
    e("v_add_f32 v96, v96, v112")
    round_bf16(96, 97)
    e("v_lshlrev_b32 v74, 16, v74")
    e("v_add_f32 v96, v96, v74")
    round_bf16(96, 97)
    e("ds_write_b32 v5, v96")
    e("s_waitcnt lgkmcnt(0)")
    lbl("L_T4SKIP")
    e("s_barrier")
    e(f"s_cmp_eq_u32 s{S_WAVE}, 7")
    e("s_cbranch_scc1 L_END")
    e("v_lshlrev_b32 v6, 2, v1")
    e(f"v_add_u32 v6, {L_H}, v6")
    xs = list(range(10, 17))
    for i in range(7):
        e(f"ds_read_b32 v{xs[i]}, v6 offset:{i*256}")
    e(f"s_lshl_b32 s69, s{S_SPLIT}, 3")
    e(f"s_add_u32 s69, s69, s{S_HKV}")
    e("s_mul_i32 s69, s69, 14")
    e(f"s_lshl_b32 s70, s{S_WAVE}, 1")
    e("s_add_u32 s69, s69, s70")
    e("s_lshl_b32 s70, s69, 2")
    e(f"s_add_u32 s70, s70, {L_H}")
    e("v_mov_b32 v7, s70")
    e("ds_read_b64 v[34:35], v7")
    e("s_waitcnt lgkmcnt(0)")
    layernorm_wave(xs, 448, 2)
    e("v_add_f32 v2, v10, v11")
    e("v_mul_f32 v3, v10, v10")
    e("v_fmac_f32 v3, v11, v11")
    for x in xs[2:]:
        e(f"v_add_f32 v2, v2, v{x}")
        e(f"v_fmac_f32 v3, v{x}, v{x}")
    e("s_and_b32 s70, s69, 63")
    e("s_lshr_b32 s71, s69, 6")
    e("s_add_u32 s74, s69, 1")
    e("s_and_b32 s75, s74, 63")
    e("s_lshr_b32 s76, s74, 6")
    e("v_mov_b32 v36, v10")
    e("v_mov_b32 v37, v10")
    for i in range(1, 7):
        e(f"s_cmp_eq_u32 s71, {i}")
        e("s_cselect_b64 s[72:73], -1, 0")
        e(f"v_cndmask_b32 v36, v36, v{10+i}, s[72:73]")
        e(f"s_cmp_eq_u32 s76, {i}")
        e("s_cselect_b64 s[72:73], -1, 0")
        e(f"v_cndmask_b32 v37, v37, v{10+i}, s[72:73]")
    wave_allreduce2(2, 3, 4, 5, 6, 7)
    e("v_readlane_b32 s40, v36, s70")
    e("v_readlane_b32 s41, v37, s75")
    e(f"v_mul_f32 v5, {hexf(1.0/448)}, v2")
    e(f"v_mul_f32 v2, {hexf(1.0/448)}, v3")
    e("v_fma_f32 v2, -v5, v5, v2")
    e("v_max_f32 v2, 0, v2")
    e("v_mov_b32 v36, s40")
    e("v_mov_b32 v37, s41")
    ln_finish_stats(2, 5, 3, 7, 448, 1e-5)
    ln_apply([36, 37], 5, 7, 3)
    k1 = -2.0*0.7978845608028654*1.4426950408889634
    k2 = k1*0.044715
    e(f"s_mov_b32 s42, {hexf(k1)}")
    e(f"s_mov_b32 s43, {hexf(k2)}")
    e("v_mov_b32 v40, 0")
    e("v_mov_b32 v41, 0")
    e("v_mov_b32 v42, s42")
    e("v_mov_b32 v38, s43")
    stamp()
    for i in range(0, 28, 2):
        for q in range(2):
            u, a = 44+q*4, 46+q*4
            w1, b1 = 128+i+q, 156+i+q
            w1p, b1p = w1 & ~1, b1 & ~1
            sel = (w1 & 1)
            e(f"v_pk_fma_f32 v[{u}:{u+1}], v[36:37], v[{w1p}:{w1p+1}], v[{b1p}:{b1p+1}] op_sel:[0,{sel},{sel}] op_sel_hi:[1,{sel},{sel}]")
            e(f"v_pk_mul_f32 v[{a}:{a+1}], v[{u}:{u+1}], v[{u}:{u+1}]")
        for q in range(2):
            u, a = 44+q*4, 46+q*4
            e(f"v_pk_fma_f32 v[{a}:{a+1}], v[{a}:{a+1}], v[38:39], v[42:43] op_sel:[0,0,0] op_sel_hi:[1,0,0]")
            e(f"v_pk_mul_f32 v[{a}:{a+1}], v[{a}:{a+1}], v[{u}:{u+1}]")
        for q in range(2):
            a = 46+q*4
            e(f"v_exp_f32 v{a}, v{a}")
            e(f"v_exp_f32 v{a+1}, v{a+1}")
        for q in range(2):
            u, a = 44+q*4, 46+q*4
            w2 = 184+i+q; w2p = w2 & ~1; sel = w2 & 1
            e(f"v_pk_mul_f32 v[{u}:{u+1}], v[{u}:{u+1}], v[{w2p}:{w2p+1}] op_sel:[0,{sel}] op_sel_hi:[1,{sel}]")
            e(f"v_pk_add_f32 v[{a}:{a+1}], v[{a}:{a+1}], 1.0 op_sel_hi:[1,0]")
        for q in range(2):
            a = 46+q*4
            e(f"v_rcp_f32 v{a}, v{a}")
            e(f"v_rcp_f32 v{a+1}, v{a+1}")
        e("s_nop 0")
        for q in range(2):
            u, a = 44+q*4, 46+q*4
            e(f"v_pk_fma_f32 v[40:41], v[{u}:{u+1}], v[{a}:{a+1}], v[40:41]")
    wave_allreduce2(40, 41, 44, 45, 46, 47)
    e("v_lshlrev_b32 v75, 16, v75")
    round_bf16_list([40, 41], 44)
    e("v_add_f32 v40, v40, v75")
    e("v_add_f32 v41, v41, v75")
    round_bf16_list([40, 41], 44)
    e("v_add_f32 v40, v40, v34")
    e("v_add_f32 v41, v41, v35")
    e("v_cvt_pk_bf16_f32 v40, v40, v41")
    srd(56, 24, 8*448*2)
    e(f"s_mul_i32 s70, s{S_B}, 448")
    e("s_add_u32 s70, s70, s69")
    e("s_lshl_b32 s70, s70, 1")
    e("v_mov_b32 v7, 0")
    e("v_cmp_eq_u32 vcc, 0, v1")
    e("s_and_saveexec_b64 s[72:73], vcc")
    e("buffer_store_dword v40, v7, s[56:59], s70 offen")
    if STAMP:
        stamp()
        e("s_waitcnt lgkmcnt(0) vmcnt(0)")
        e(f"s_cmp_lg_u32 s{S_WAVE}, 0")
        e("s_cbranch_scc1 L_END")
        srd(56, 28, 65536, 0x200000)
        e("s_lshl_b32 s69, s2, 6")
        for i in range(nstamp[0]):
            e(f"s_sub_u32 s70, s{80+2*i}, s80")
            e("v_mov_b32 v2, s70")
            e(f"buffer_store_dword v2, v7, s[56:59], s69 offen offset:{i*4}")
        e("v_mov_b32 v2, s80")
        e(f"buffer_store_dword v2, v7, s[56:59], s69 offen offset:60")
    lbl("L_END")
    e("s_endpgm")
    e('.section .rodata,"a"')
    e(".p2align 6")
    e(f".amdhsa_kernel {k}")
    e("  .amdhsa_next_free_vgpr 256")
    e("  .amdhsa_next_free_sgpr 102")
    e("  .amdhsa_accum_offset 256")
    e("  .amdhsa_group_segment_fixed_size 0")
    e("  .amdhsa_kernarg_size 104")
    e("  .amdhsa_user_sgpr_count 2")
    e("  .amdhsa_user_sgpr_kernarg_segment_ptr 1")
    e("  .amdhsa_system_sgpr_workgroup_id_x 1")
    e(".end_amdhsa_kernel")

hdr = open(f"cdna_kernels/{NAME}.s.ref").read().split("\n")
for h in hdr:
    if h.startswith(";") and "@launch" not in h and "Override launch" not in h and "grid=ceil" not in h:
        e(h)
e(f"; @launch grid=(256,1,1) block=(512,1,1) lds={L_END}")
e('.amdgcn_target "amdgcn-amd-amdhsa--gfx950"')
gen()
open(OUT, "w").write("\n".join(L) + "\n")
print("wrote", OUT, len(L), "lines; lds", L_END)
```

```python
import sys, struct
NAME = "sequential_preLN__gqa_block_cached__mixer_token_mlp__decode"
OUT = sys.argv[1] if len(sys.argv) > 1 else f"cdna_kernels/{NAME}.s"
STAMP = len(sys.argv) > 2 and sys.argv[2] == "stamp"

WS_QG = 0x0
WS_PG = 0x20000
PG_STRIDE = 258*16
WS_OG = 0x130000
WS_CNT = 0x170000
L_WOQ = 0
L_XN  = 114688
L_QL  = L_XN + 7168
L_CMB = L_QL + 1024
L_ML  = L_CMB + 16384
L_OL  = L_ML + 128
L_H   = L_OL + 4096
L_NON = L_H + 1792
L_ML2 = L_NON + 16
L_FLG = L_ML2 + 64
L_END = L_FLG + 16

L = []
def e(s=""): L.append(s)
def lbl(s): L.append(s + ":")
C_SCALE = 0.0625 * 1.4426950408889634
def f2u(x): return struct.unpack("<I", struct.pack("<f", x))[0]
def hexf(x): return "0x%08x" % f2u(x)
DPPM = "row_mask:0xf bank_mask:0xf"
nstamp = [0]
def stamp():
    if STAMP:
        n = nstamp[0]; nstamp[0] += 1
        e(f"s_memrealtime s[{80+2*n}:{81+2*n}]")

def wave_allreduce(v, t1, t2, op="add"):
    ins = {"add": "v_add_f32", "max": "v_max_f32"}[op]
    for mod in ["quad_perm:[1,0,3,2]", "quad_perm:[2,3,0,1]", "row_half_mirror", "row_mirror"]:
        e("s_nop 1")
        e(f"{ins}_dpp v{v}, v{v}, v{v} {mod} {DPPM}")
    for sw in ["v_permlane16_swap_b32", "v_permlane32_swap_b32"]:
        e(f"v_mov_b32 v{t1}, v{v}")
        e(f"v_mov_b32 v{t2}, v{v}")
        e("s_nop 1")
        e(f"{sw} v{t1}, v{t2}")
        e("s_nop 1")
        e(f"{ins} v{v}, v{t1}, v{t2}")

def wave_allreduce2(v, w, t1, t2, t3, t4):
    e("s_nop 0")
    for mod in ["quad_perm:[1,0,3,2]", "quad_perm:[2,3,0,1]", "row_half_mirror", "row_mirror"]:
        e("s_nop 0")
        e(f"v_add_f32_dpp v{v}, v{v}, v{v} {mod} {DPPM}")
        e(f"v_add_f32_dpp v{w}, v{w}, v{w} {mod} {DPPM}")
    for sw in ["v_permlane16_swap_b32", "v_permlane32_swap_b32"]:
        e(f"v_mov_b32 v{t1}, v{v}")
        e(f"v_mov_b32 v{t2}, v{v}")
        e(f"v_mov_b32 v{t3}, v{w}")
        e(f"v_mov_b32 v{t4}, v{w}")
        e(f"{sw} v{t1}, v{t2}")
        e("s_nop 0")
        e(f"{sw} v{t3}, v{t4}")
        e("s_nop 0")
        e(f"v_add_f32 v{v}, v{t1}, v{t2}")
        e(f"v_add_f32 v{w}, v{t3}, v{t4}")

def srd(d, b, nbytes, off=0):
    if off:
        e(f"s_add_u32 s{d}, s{b}, {off}")
        e(f"s_addc_u32 s{d+1}, s{b+1}, 0")
        e(f"s_and_b32 s{d+1}, s{d+1}, 0xffff")
    else:
        e(f"s_mov_b32 s{d}, s{b}")
        e(f"s_and_b32 s{d+1}, s{b+1}, 0xffff")
    e(f"s_mov_b32 s{d+2}, {nbytes}")
    e(f"s_mov_b32 s{d+3}, 0x00020000")

def round_bf16(v, t):
    e(f"v_cvt_pk_bf16_f32 v{t}, v{v}, v{v}")
    e(f"v_lshlrev_b32 v{v}, 16, v{t}")

def round_bf16_list(xs, t):
    for i in range(0, len(xs)-1, 2):
        e(f"v_cvt_pk_bf16_f32 v{t}, v{xs[i]}, v{xs[i+1]}")
        e(f"v_lshlrev_b32 v{xs[i]}, 16, v{t}")
        e(f"v_and_b32 v{xs[i+1]}, 0xffff0000, v{t}")
    if len(xs) & 1:
        round_bf16(xs[-1], t)

def ln_finish_stats(s, m, a, d, n, eps):
    e(f"v_cvt_pk_bf16_f32 v{a}, v{m}, v{s}")
    e(f"v_lshlrev_b32 v{m}, 16, v{a}")
    e(f"v_and_b32 v{s}, 0xffff0000, v{a}")
    e(f"v_add_f32 v{s}, {hexf(eps)}, v{s}")
    round_bf16(s, a)
    e(f"v_sqrt_f32 v{s}, v{s}")
    e("s_nop 0")
    round_bf16(s, a)
    e(f"v_rcp_f32 v{d}, v{s}")
    e("s_nop 0")

def ln_apply(xs, m, d, a):
    for x in xs:
        e(f"v_sub_f32 v{x}, v{x}, v{m}")
    round_bf16_list(xs, a)
    for x in xs:
        e(f"v_mul_f32 v{x}, v{x}, v{d}")
    round_bf16_list(xs, a)

def layernorm_wave(xs, n, t, eps=1e-5):
    s, a, b, m, c, d = t, t+1, t+2, t+3, t+4, t+5
    e(f"v_add_f32 v{s}, v{xs[0]}, v{xs[1]}")
    for x in xs[2:]:
        e(f"v_add_f32 v{s}, v{s}, v{x}")
    wave_allreduce(s, a, b)
    e(f"v_mul_f32 v{m}, {hexf(1.0/n)}, v{s}")
    e(f"v_sub_f32 v{c}, v{xs[0]}, v{m}")
    e(f"v_mul_f32 v{s}, v{c}, v{c}")
    for x in xs[1:]:
        e(f"v_sub_f32 v{c}, v{x}, v{m}")
        e(f"v_fmac_f32 v{s}, v{c}, v{c}")
    wave_allreduce(s, a, b)
    e(f"v_mul_f32 v{s}, {hexf(1.0/n)}, v{s}")
    ln_finish_stats(s, m, a, d, n, eps)
    ln_apply(xs, m, d, a)

KB, VB, TB, OB = 32, 96, 160, 192
QB, SB, PB = 2, 10, 18
VM, VL, VMC, VKO, VVO, VT1, VT2, VT3, VBP, VT4 = 22, 23, 24, 25, 26, 27, 28, 29, 30, 31
import os
PACE = int(os.environ.get("PACE","8"))
GRP = int(os.environ.get("GRP","8"))
PSL = int(os.environ.get("PSL","4"))
KNT = os.environ.get("KNT"," nt")
VNT = os.environ.get("VNT"," nt")
S_WAVE, S_HKV, S_B, S_SPLIT, S_PAIR, S_BASE, S_CNT, S_SLO, S_SHI, S_C = 3, 60, 61, 62, 63, 64, 65, 66, 67, 68
S_N = 78
S_PB = 15
VAT, VZ = 31, 1+0
S_CO = 14

def loads_K():
    for i in range(8):
        for jj in range(2):
            r = KB + (i*2+jj)*4
            e(f"buffer_load_dwordx4 v[{r}:{r+3}], v{VKO}, s[32:35], s{S_BASE} offen offset:{i*512+jj*256}{KNT}")
def loads_V():
    for h in range(2):
        for i in range(8):
            r = VB + (h*8+i)*4
            e(f"buffer_load_dwordx4 v[{r}:{r+3}], v{VVO}, s[36:39], s{S_BASE} offen offset:{i*512+h*256}{VNT}")

def first_grab():
    e(f"s_lshl_b32 s69, s{S_SPLIT}, 3")
    e(f"s_add_u32 s69, s69, s{S_WAVE}")
    e("s_add_u32 s69, s69, 32")
    e(f"v_mov_b32 v{VAT}, s69")
    e("s_mov_b64 exec, 1")
    e(f"buffer_load_dword v{PB+3}, v{VZ}, s[32:35], s{S_BASE} offen")
    e("s_mov_b64 exec, -1")

def paced_prefetch():
    lst = []
    for i in range(8):
        for jj in range(2):
            r = KB + (i*2+jj)*4
            lst.append(f"buffer_load_dwordx4 v[{r}:{r+3}], v{VKO}, s[32:35], s{S_BASE} offen offset:{i*512+jj*256}{KNT}")
    lst.append("GRAB")
    for h in range(2):
        for i in range(8):
            r = VB + (h*8+i)*4
            lst.append(f"buffer_load_dwordx4 v[{r}:{r+3}], v{VVO}, s[36:39], s{S_BASE} offen offset:{i*512+h*256}{VNT}")
    e(f"v_mov_b32 v4, {L_FLG}")
    n = 0; k = 0
    for x in lst:
        if x == "GRAB":
            first_grab(); continue
        e(x); n += 1
        if n % GRP == 0 and n < 32:
            e("ds_read_b32 v5, v4")
            e("s_waitcnt lgkmcnt(0)")
            e("v_readfirstlane_b32 s69, v5")
            e("s_cmp_lg_u32 s69, 0")
            e(f"s_cbranch_scc1 L_PSK{k}")
            e(f"s_waitcnt vmcnt({PACE})")
            lbl(f"L_PSK{k}")
            k += 1

def poll(tag, issue, gregs, sleep=4):
    lbl(f"{tag}_RETRY")
    issue()
    e("s_waitcnt vmcnt(0)")
    e("s_mov_b64 s[72:73], exec")
    for g in gregs:
        e(f"v_cmp_eq_u64 vcc, s[{S_N}:{S_N+1}], v[{g+2}:{g+3}]")
        e("s_and_b64 s[72:73], s[72:73], vcc")
    e("s_cmp_eq_u64 s[72:73], exec")
    e(f"s_cbranch_scc1 {tag}_OK")
    e(f"s_sleep {sleep}")
    e(f"s_branch {tag}_RETRY")
    lbl(f"{tag}_OK")

def gen():
    k = f"{NAME}_kernel"
    e(".text"); e(f".globl {k}"); e(".p2align 8"); e(f".type {k},@function"); lbl(k)
    stamp()
    e("s_cmp_ge_u32 s2, 256")
    e("s_cbranch_scc1 L_END")
    e("s_load_dwordx8 s[4:11], s[0:1], 0")
    e("s_load_dwordx2 s[12:13], s[0:1], 32")
    e("s_load_dwordx8 s[16:23], s[0:1], 48")
    e("s_load_dwordx4 s[24:27], s[0:1], 80")
    e("s_load_dwordx2 s[28:29], s[0:1], 96")
    e("s_memrealtime s[74:75]")
    e(f"v_lshrrev_b32 v{VT4}, 6, v0")
    e("v_and_b32 v1, 63, v0")
    e(f"v_readfirstlane_b32 s{S_WAVE}, v{VT4}")
    e(f"s_lshr_b32 s{S_PAIR}, s2, 2")
    e(f"s_and_b32 s{S_SPLIT}, s2, 3")
    e(f"s_and_b32 s{S_HKV}, s{S_PAIR}, 7")
    e(f"s_lshr_b32 s{S_B}, s{S_PAIR}, 3")
    e(f"s_mov_b32 s{S_SLO}, 0x05040100")
    e(f"s_mov_b32 s{S_SHI}, 0x07060302")
    e(f"s_mov_b32 s{S_C}, {hexf(C_SCALE)}")
    e(f"s_lshl_b32 s{S_PB}, s{S_PAIR}, 22")
    e(f"s_lshl_b32 s69, s{S_SPLIT}, 17")
    e(f"s_add_u32 s{S_BASE}, s{S_PB}, s69")
    e(f"s_lshl_b32 s69, s{S_WAVE}, 14")
    e(f"s_add_u32 s{S_BASE}, s{S_BASE}, s69")
    e(f"v_and_b32 v{VT1}, 15, v1")
    e(f"v_lshrrev_b32 v{VT2}, 4, v1")
    e(f"v_lshrrev_b32 v{VT3}, 2, v{VT1}")
    e(f"v_lshlrev_b32 v{VKO}, 12, v{VT3}")
    e(f"v_lshl_add_u32 v{VKO}, v{VT2}, 6, v{VKO}")
    e(f"v_and_b32 v{VT3}, 3, v{VT1}")
    e(f"v_lshl_add_u32 v{VKO}, v{VT3}, 4, v{VKO}")
    e(f"v_lshlrev_b32 v{VVO}, 12, v{VT2}")
    e(f"v_lshl_add_u32 v{VVO}, v{VT1}, 4, v{VVO}")
    e(f"v_lshlrev_b32 v{VBP}, 4, v{VT2}")
    e("s_waitcnt lgkmcnt(0)")
    srd(32, 6, 0x10000000)
    srd(36, 8, 0x10000000)
    srd(40, 4, 8*448*2)
    srd(44, 10, 448*4096*2)
    srd(48, 26, 256)
    e(f"s_mul_i32 s69, s{S_WAVE}, 896")
    e(f"v_lshlrev_b32 v{VT3}, 1, v1")
    xs = list(range(10, 17))
    for i in range(7):
        e(f"buffer_load_ushort v{xs[i]}, v{VT3}, s[40:43], s69 offen offset:{i*128}")
    e(f"s_lshl_b32 s70, s{S_SPLIT}, 3")
    e(f"s_add_u32 s77, s70, s{S_B}")
    e(f"s_cmp_eq_u32 s{S_WAVE}, 7")
    e("s_cbranch_scc1 L_NONCE")
    e(f"v_lshrrev_b32 v{VT4}, 3, v1")
    e(f"v_lshlrev_b32 v{VT4}, 16, v{VT4}")
    e(f"v_and_b32 v{VT3}, 7, v1")
    e(f"v_lshl_add_u32 v{VT4}, v{VT3}, 2, v{VT4}")
    e("s_lshl_b32 s70, s77, 5")
    e(f"s_lshl_b32 s71, s{S_HKV}, 10")
    e("s_add_u32 s70, s70, s71")
    e(f"s_lshl_b32 s71, s{S_WAVE}, 19")
    e("s_add_u32 s71, s71, s70")
    for i in range(8):
        e(f"buffer_load_dword v{160+i}, v{VT4}, s[44:47], s71 offen")
        e("s_add_u32 s71, s71, 8192")
    e("s_waitcnt vmcnt(8)")
    e("s_branch L_LN")
    lbl("L_NONCE")
    e("s_or_b32 s74, s74, 1")
    e("v_mov_b32 v160, s74")
    e("v_mov_b32 v161, s75")
    e("v_mov_b32 v162, 0")
    e("v_mov_b32 v163, 0")
    e("v_mov_b32 v164, 0")
    e("s_cmp_ge_u32 s2, 8")
    e("s_cbranch_scc1 L_NOCAS")
    e("s_mov_b64 exec, 1")
    e("buffer_atomic_cmpswap_x2 v[160:163], v164, s[48:51], 0 offen")
    e("s_mov_b64 exec, -1")
    e("s_waitcnt vmcnt(1)")
    e("s_branch L_LN")
    lbl("L_NOCAS")
    e("s_waitcnt vmcnt(0)")
    lbl("L_LN")
    stamp()
    for x in xs:
        e(f"v_lshlrev_b32 v{x}, 16, v{x}")
    layernorm_wave(xs, 448, 2)
    e(f"v_lshlrev_b32 v{VT3}, 1, v1")
    e(f"s_add_u32 s69, s69, {L_XN}")
    e(f"v_add_u32 v{VT3}, s69, v{VT3}")
    for i, x in enumerate(xs):
        e(f"v_lshrrev_b32 v{x}, 16, v{x}")
        e(f"ds_write_b16 v{VT3}, v{x} offset:{i*128}")
    e(f"v_and_b32 v{VT3}, 7, v1")
    e(f"v_mul_u32_u24 v{VT3}, 896, v{VT3}")
    e(f"v_lshrrev_b32 v{VT4}, 3, v1")
    e(f"v_lshl_add_u32 v{VT3}, v{VT4}, 4, v{VT3}")
    e(f"s_lshl_b32 s69, s{S_WAVE}, 7")
    e(f"s_add_u32 s69, s69, {L_XN}")
    e(f"v_add_u32 v{VT3}, s69, v{VT3}")
    e("s_waitcnt lgkmcnt(0)")
    e("s_barrier")
    e(f"s_cmp_eq_u32 s{S_WAVE}, 7")
    e("s_cbranch_scc1 L_NONCE2")
    e(f"ds_read_b128 v[2:5], v{VT3}")
    e("s_waitcnt vmcnt(0)")
    for p in range(4):
        e(f"v_perm_b32 v{168+p}, v{161+2*p}, v{160+2*p}, s{S_SLO}")
        e(f"v_perm_b32 v{172+p}, v{161+2*p}, v{160+2*p}, s{S_SHI}")
    e(f"v_lshrrev_b32 v{VT3}, 4, v1")
    e(f"v_lshlrev_b32 v{VT3}, 8, v{VT3}")
    e(f"v_and_b32 v{VT4}, 7, v1")
    e(f"v_lshl_add_u32 v{VT3}, v{VT4}, 3, v{VT3}")
    e(f"s_lshl_b32 s69, s{S_WAVE}, 10")
    e(f"s_add_u32 s69, s69, {L_CMB}")
    e(f"v_add_u32 v{VT3}, s69, v{VT3}")
    e(f"v_lshrrev_b32 v{VT4}, 5, v1")
    e(f"v_bfe_u32 v6, v1, 3, 1")
    e(f"v_cmp_eq_u32 vcc, v{VT4}, v6")
    e("s_waitcnt lgkmcnt(0)")
    e("v_mfma_f32_16x16x32_bf16 v[176:179], v[2:5], v[168:171], 0")
    e("v_mfma_f32_16x16x32_bf16 v[180:183], v[2:5], v[172:175], 0")
    e("s_and_saveexec_b64 s[72:73], vcc")
    e("s_nop 7")
    for r in range(4):
        e(f"v_mov_b32 v6, v{176+r}")
        e(f"v_mov_b32 v7, v{180+r}")
        e(f"ds_write_b64 v{VT3}, v[6:7] offset:{r*64}")
    e("s_mov_b64 exec, s[72:73]")
    e("s_branch L_QRED")
    lbl("L_NONCE2")
    e("buffer_load_dwordx2 v[2:3], v164, s[48:51], 0 offen sc1")
    e("s_waitcnt vmcnt(0)")
    e("v_readfirstlane_b32 s70, v2")
    e("v_readfirstlane_b32 s71, v3")
    e("s_cmp_eq_u64 s[70:71], 0")
    e("s_cbranch_scc1 L_NONCE2")
    e(f"v_mov_b32 v4, {L_NON}")
    e("ds_write_b64 v4, v[2:3]")
    e("v_mov_b32 v5, 0")
    e(f"ds_write_b32 v4, v5 offset:{L_FLG-L_NON}")
    lbl("L_QRED")
    e("s_waitcnt lgkmcnt(0)")
    e("s_barrier")
    stamp()
    e(f"v_mov_b32 v4, {L_NON}")
    e("ds_read_b64 v[2:3], v4")
    e("s_waitcnt lgkmcnt(0)")
    e(f"v_readfirstlane_b32 s{S_N}, v2")
    e(f"v_readfirstlane_b32 s{S_N+1}, v3")
    srd(8, 28, 64*256, WS_CNT)
    e(f"s_lshl_b32 s{S_CO}, s{S_PAIR}, 8")
    e(f"s_cmp_lg_u32 s{S_WAVE}, 0")
    e("s_cbranch_scc1 L_PACED")
    e(f"v_lshlrev_b32 v{VT3}, 3, v1")
    e(f"v_add_u32 v{VT3}, {L_CMB}, v{VT3}")
    for i in range(14):
        e(f"ds_read_b64 v[{32+2*i}:{33+2*i}], v{VT3} offset:{i*512}")
    srd(40, 28, 64*128*16, WS_QG)
    e(f"v_lshrrev_b32 v{VT3}, 3, v1")
    e(f"v_lshlrev_b32 v{VT3}, 14, v{VT3}")
    e(f"v_and_b32 v{VT4}, 7, v1")
    e(f"v_lshl_add_u32 v{VT3}, v{VT4}, 3, v{VT3}")
    e(f"s_lshl_b32 s69, s{S_HKV}, 11")
    e("s_lshl_b32 s70, s77, 6")
    e("s_add_u32 s69, s69, s70")
    e(f"v_mov_b32 v14, s{S_N}")
    e(f"v_mov_b32 v15, s{S_N+1}")
    e(f"s_cmp_lg_u32 s{S_SPLIT}, 0")
    e("s_cbranch_scc1 L_NOINIT")
    srd(44, 28, 64*256, WS_CNT)
    e(f"s_lshl_b32 s70, s{S_PAIR}, 8")
    e("v_mov_b32 v12, 64")
    e("v_mov_b32 v13, 0")
    e("s_mov_b64 exec, 1")
    e("buffer_store_dword v12, v13, s[44:47], s70 offen sc1")
    e("s_mov_b64 exec, -1")
    e("s_waitcnt vmcnt(0)")
    lbl("L_NOINIT")
    e("s_waitcnt lgkmcnt(0)")
    for i in range(1, 14):
        e(f"v_add_f32 v32, v32, v{32+2*i}")
        e(f"v_add_f32 v33, v33, v{33+2*i}")
    e("v_cvt_pk_bf16_f32 v12, v32, v33")
    e("s_nop 1")
    e(f"v_mov_b32_dpp v13, v12 quad_perm:[1,0,3,2] {DPPM}")
    e("s_mov_b32 exec_lo, 0x55555555")
    e("s_mov_b32 exec_hi, 0x55555555")
    e(f"buffer_store_dwordx4 v[12:15], v{VT3}, s[40:43], s69 offen sc1")
    e("s_mov_b64 exec, -1")
    stamp()
    e(f"v_lshlrev_b32 v{VT3}, 4, v1")
    e(f"s_lshl_b32 s69, s{S_PAIR}, 11")
    def iss():
        e(f"buffer_load_dwordx4 v[32:35], v{VT3}, s[40:43], s69 offen sc1")
        e(f"buffer_load_dwordx4 v[36:39], v{VT3}, s[40:43], s69 offen offset:1024 sc1")
    poll("L_H0", iss, [32, 36], sleep=2)
    stamp()
    e(f"v_lshlrev_b32 v{VT3}, 3, v1")
    e(f"v_add_u32 v{VT3}, {L_QL}, v{VT3}")
    e(f"ds_write_b64 v{VT3}, v[32:33]")
    e(f"ds_write_b64 v{VT3}, v[36:37] offset:512")
    e("v_mov_b32 v5, 1")
    e(f"v_mov_b32 v4, {L_FLG}")
    e("ds_write_b32 v4, v5")
    loads_K()
    first_grab()
    loads_V()
    e("s_waitcnt lgkmcnt(0)")
    e("s_branch L_JOIN")
    lbl("L_PACED")
    paced_prefetch()
    lbl("L_JOIN")
    e("s_barrier")
    stamp()
    e(f"v_and_b32 v{VT1}, 15, v1")
    e(f"v_lshrrev_b32 v{VT2}, 4, v1")
    e(f"v_and_b32 v{VT3}, 7, v{VT1}")
    e(f"v_lshrrev_b32 v20, 2, v{VT3}")
    e(f"v_lshlrev_b32 v20, 9, v20")
    e(f"v_lshl_add_u32 v20, v{VT2}, 6, v20")
    e(f"v_and_b32 v{VT3}, 3, v{VT1}")
    e(f"v_lshl_add_u32 v20, v{VT3}, 4, v20")
    e(f"v_add_u32 v20, {L_QL}, v20")
    e(f"ds_read_b128 v[{QB}:{QB+3}], v20")
    e(f"ds_read_b128 v[{QB+4}:{QB+7}], v20 offset:256")
    e(f"s_cmp_lt_u32 s{S_WAVE}, 4")
    e("s_cbranch_scc1 L_NODMA")
    srd(40, 12, 4096*448*2)
    e(f"v_mul_u32_u24 v{VT3}, 4682, v1")
    e(f"v_lshrrev_b32 v{VT3}, 16, v{VT3}")
    e(f"v_mul_u32_u24 v{VT2}, 672, v{VT3}")
    e(f"v_lshl_add_u32 v{VT2}, v1, 4, v{VT2}")
    e(f"s_sub_u32 s69, s{S_WAVE}, 4")
    e("s_mul_i32 s70, s69, 28672")
    e(f"s_lshl_b32 s71, s{S_HKV}, 2")
    e("s_add_u32 s71, s71, s69")
    e("s_mul_i32 s71, s71, 114688")
    e(f"s_mul_i32 s72, s{S_SPLIT}, 224")
    e("s_add_u32 s71, s71, s72")
    e("s_mov_b32 s72, 0")
    e("s_mov_b32 exec_hi, 0x00ffffff")
    lbl("L_WODMA")
    e("s_mov_b32 m0, s70")
    e("s_add_u32 s70, s70, 896")
    e(f"buffer_load_dwordx4 v{VT2}, s[40:43], s71 offen lds")
    e("s_add_u32 s71, s71, 3584")
    e("s_add_u32 s72, s72, 1")
    e("s_cmp_lt_u32 s72, 32")
    e("s_cbranch_scc1 L_WODMA")
    e("s_mov_b64 exec, -1")
    lbl("L_NODMA")
    for r in range(64):
        e(f"v_mov_b32 v{OB+r}, 0")
    e(f"v_mov_b32 v{VM}, 0xff7fffff")
    e(f"v_mov_b32 v{VL}, 0")
    e(f"v_mov_b32 v{VMC}, 0")
    e(f"v_cmp_gt_u32 vcc, 8, v{VT1}")
    e("s_waitcnt lgkmcnt(0)")
    e("s_nop 0")
    for r in range(8):
        e(f"v_cndmask_b32 v{QB+r}, 0, v{QB+r}, vcc")
    e(f"s_mov_b32 s{S_CNT}, 0")
    srd(40, 16, 3584)
    srd(44, 18, 3584)
    srd(48, 20, 3584)
    srd(52, 22, 2)
    srd(56, 4, 8*448*2)
    lbl("L_LOOP")
    e("s_waitcnt vmcnt(17)")
    for jj in range(2):
        for i in range(8):
            d = TB + i*4
            kk = KB + (i*2+jj)*4
            c = "0" if jj == 0 else f"v[{d}:{d+3}]"
            e(f"v_mfma_f32_16x16x32_bf16 v[{d}:{d+3}], v[{kk}:{kk+3}], v[{QB+jj*4}:{QB+jj*4+3}], {c}")
    e("s_waitcnt vmcnt(16)")
    e(f"v_readfirstlane_b32 s69, v{VAT}")
    e("s_cmp_ge_u32 s69, 256")
    e("s_cbranch_scc1 L_LASTK")
    e("s_lshl_b32 s69, s69, 14")
    e(f"s_add_u32 s{S_BASE}, s{S_PB}, s69")
    loads_K()
    e(f"v_mov_b32 v{VAT}, 1")
    e("s_mov_b64 exec, 1")
    e(f"buffer_atomic_add v{VAT}, v{VZ}, s[8:11], s{S_CO} offen sc0")
    e("s_mov_b64 exec, -1")
    e("s_branch L_AFTK")
    lbl("L_LASTK")
    e(f"s_mov_b32 s{S_CNT}, 1")
    e(f"v_mul_u32_u24 v{VT1}, 56, v1")
    for base, sr in [(32, 40), (46, 44), (60, 48)]:
        for i in range(7):
            e(f"buffer_load_dwordx2 v[{base+2*i}:{base+2*i+1}], v{VT1}, s[{sr}:{sr+3}], 0 offen offset:{i*8}")
    e(f"v_lshlrev_b32 v{VT1}, 1, v0")
    e(f"s_mul_i32 s69, s{S_B}, 896")
    e(f"buffer_load_ushort v74, v{VT1}, s[56:59], s69 offen")
    e(f"v_mov_b32 v{VT1}, 0")
    e(f"buffer_load_ushort v75, v{VT1}, s[52:55], 0 offen")
    lbl("L_AFTK")
    for i in range(8):
        d = TB + i*4
        e(f"v_mov_b32_dpp v{SB+i}, v{d} quad_perm:[0,0,0,0] {DPPM}")
        e(f"v_add_f32_dpp v{SB+i}, v{d+1}, v{SB+i} quad_perm:[1,1,1,1] {DPPM}")
        e(f"v_add_f32_dpp v{SB+i}, v{d+2}, v{SB+i} quad_perm:[2,2,2,2] {DPPM}")
        e(f"v_add_f32_dpp v{SB+i}, v{d+3}, v{SB+i} quad_perm:[3,3,3,3] {DPPM}")
    for i in range(0, 8, 2):
        e(f"v_cvt_pk_bf16_f32 v{VT1}, v{SB+i}, v{SB+i+1}")
        e(f"v_lshlrev_b32 v{SB+i}, 16, v{VT1}")
        e(f"v_and_b32 v{SB+i+1}, 0xffff0000, v{VT1}")
    e(f"v_max3_f32 v{VT1}, v{SB}, v{SB+1}, v{SB+2}")
    e(f"v_max3_f32 v{VT1}, v{VT1}, v{SB+3}, v{SB+4}")
    e(f"v_max3_f32 v{VT1}, v{VT1}, v{SB+5}, v{SB+6}")
    e(f"v_max_f32 v{VT1}, v{VT1}, v{SB+7}")
    e(f"v_cmp_gt_f32 vcc, v{VT1}, v{VM}")
    e("s_cbranch_vccz L_FAST")
    for sw in ["v_permlane16_swap_b32", "v_permlane32_swap_b32"]:
        e(f"v_mov_b32 v{VT2}, v{VT1}")
        e(f"v_mov_b32 v{VT3}, v{VT1}")
        e("s_nop 1")
        e(f"{sw} v{VT2}, v{VT3}")
        e("s_nop 1")
        e(f"v_max_f32 v{VT1}, v{VT2}, v{VT3}")
    e(f"v_max_f32 v{VT1}, v{VT1}, v{VM}")
    e(f"v_sub_f32 v{VT2}, v{VM}, v{VT1}")
    e(f"v_mul_f32 v{VT2}, s{S_C}, v{VT2}")
    e(f"v_exp_f32 v{VT2}, v{VT2}")
    e(f"v_mov_b32 v{VM}, v{VT1}")
    e(f"v_mul_f32 v{VMC}, s{S_C}, v{VT1}")
    e(f"v_mul_f32 v{VL}, v{VL}, v{VT2}")
    e(f"ds_bpermute_b32 v{VT3}, v{VBP}, v{VT2}")
    e("s_waitcnt lgkmcnt(0)")
    for r in range(64):
        e(f"v_mul_f32 v{OB+r}, v{OB+r}, v{VT3}")
    lbl("L_FAST")
    for i in range(8):
        e(f"v_fma_f32 v{SB+i}, v{SB+i}, s{S_C}, -v{VMC}")
    for i in range(8):
        e(f"v_exp_f32 v{SB+i}, v{SB+i}")
    e("s_nop 0")
    for i in range(0, 8, 2):
        e(f"v_cvt_pk_bf16_f32 v{PB+i//2}, v{SB+i}, v{SB+i+1}")
    e(f"v_add_f32 v{VT1}, v{SB}, v{SB+1}")
    e(f"v_add_f32 v{VT2}, v{SB+2}, v{SB+3}")
    e(f"v_add_f32 v{VT3}, v{SB+4}, v{SB+5}")
    e(f"v_add_f32 v{VT1}, v{VT1}, v{VT2}")
    e(f"v_add_f32 v{VT2}, v{SB+6}, v{SB+7}")
    e(f"v_add_f32 v{VT3}, v{VT3}, v{VT2}")
    e(f"v_add_f32 v{VT1}, v{VT1}, v{VT3}")
    e(f"v_add_f32 v{VL}, v{VL}, v{VT1}")
    e(f"s_cmp_eq_u32 s{S_CNT}, 1")
    e("s_cbranch_scc0 L_W16")
    e("s_waitcnt vmcnt(0)")
    lbl("L_W16")
    e("s_waitcnt vmcnt(17)")
    for h in range(2):
        for w in range(4):
            for p in range(4):
                a = VB + (h*8+2*p)*4 + w
                b = VB + (h*8+2*p+1)*4 + w
                e(f"v_perm_b32 v{TB+(2*w)*4+p}, v{b}, v{a}, s{S_SLO}")
                e(f"v_perm_b32 v{TB+(2*w+1)*4+p}, v{b}, v{a}, s{S_SHI}")
        if h == 1:
            e(f"s_cmp_eq_u32 s{S_CNT}, 1")
            e("s_cbranch_scc1 L_SKIPV")
            loads_V()
            lbl("L_SKIPV")
        e("s_nop 1")
        for j in range(8):
            o = OB + (h*8+j)*4
            e(f"v_mfma_f32_16x16x32_bf16 v[{o}:{o+3}], v[{PB}:{PB+3}], v[{TB+j*4}:{TB+j*4+3}], v[{o}:{o+3}]")
    e(f"s_cmp_eq_u32 s{S_CNT}, 0")
    e("s_cbranch_scc1 L_LOOP")
    stamp()
    if STAMP:
        e("s_waitcnt lgkmcnt(0)")
        srd(56, 28, 65536, 0x210000)
        e("s_lshl_b32 s69, s2, 3")
        e(f"s_add_u32 s69, s69, s{S_WAVE}")
        e("s_lshl_b32 s69, s69, 2")
        e(f"v_mov_b32 v{VT1}, s{80+2*(nstamp[0]-1)}")
        e(f"v_mov_b32 v{VT2}, 0")
        e(f"buffer_store_dword v{VT1}, v{VT2}, s[56:59], s69 offen")
    for sw in ["v_permlane16_swap_b32", "v_permlane32_swap_b32"]:
        e(f"v_mov_b32 v{VT2}, v{VL}")
        e(f"v_mov_b32 v{VT3}, v{VL}")
        e("s_nop 1")
        e(f"{sw} v{VT2}, v{VT3}")
        e("s_nop 1")
        e(f"v_add_f32 v{VL}, v{VT2}, v{VT3}")
    e(f"v_and_b32 v{VT1}, 15, v1")
    e(f"v_lshrrev_b32 v{VT2}, 4, v1")
    e(f"v_lshlrev_b32 v{VT3}, 10, v{VT2}")
    e(f"v_lshl_add_u32 v{VT3}, v{VT1}, 5, v{VT3}")
    e(f"s_lshl_b32 s69, s{S_WAVE}, 11")
    e(f"s_add_u32 s69, s69, {L_CMB}")
    e(f"v_add_u32 v{VT3}, s69, v{VT3}")
    e("v_cmp_gt_u32 vcc, 32, v1")
    e("s_and_saveexec_b64 s[72:73], vcc")
    for h in range(2):
        for j in range(8):
            e(f"ds_write_b32 v{VT3}, v{OB+(h*8+j)*4} offset:{(h*128+j)*4}")
    e("s_mov_b64 exec, s[72:73]")
    e(f"v_lshlrev_b32 v{VT3}, 1, v1")
    e(f"s_lshl_b32 s69, s{S_WAVE}, 4")
    e(f"s_add_u32 s69, s69, {L_ML}")
    e(f"v_add_u32 v{VT3}, s69, v{VT3}")
    e(f"v_and_b32 v{VT1}, 0xfb, v1")
    e(f"v_cmp_eq_u32 vcc, 0, v{VT1}")
    e("s_and_saveexec_b64 s[72:73], vcc")
    e(f"ds_write_b64 v{VT3}, v[{VM}:{VM+1}]")
    e("s_mov_b64 exec, s[72:73]")
    srd(40, 28, 256*PG_STRIDE, WS_PG)
    srd(52, 28, 64*3584, WS_OG)
    e("v_lshrrev_b32 v2, 8, v0")
    e("v_lshlrev_b32 v3, 3, v2")
    e(f"v_add_u32 v3, {L_ML}, v3")
    e("v_lshlrev_b32 v4, 2, v0")
    e(f"v_add_u32 v5, {L_CMB}, v4")
    e("v_and_b32 v9, 0xfffffffe, v0")
    e("v_lshlrev_b32 v9, 3, v9")
    e(f"v_mov_b32 v14, s{S_N}")
    e(f"v_mov_b32 v15, s{S_N+1}")
    e(f"v_mov_b32 v18, s{S_N}")
    e(f"v_mov_b32 v19, s{S_N+1}")
    e("s_waitcnt lgkmcnt(0)")
    e("s_barrier")
    for w in range(8):
        e(f"ds_read_b64 v[{96+2*w}:{97+2*w}], v3 offset:{w*16}")
    for w in range(8):
        e(f"ds_read_b32 v{112+w}, v5 offset:{w*2048}")
    e(f"s_lshl_b32 s69, s{S_PAIR}, 2")
    e(f"s_add_u32 s69, s69, s{S_SPLIT}")
    e(f"s_mul_i32 s69, s69, {PG_STRIDE}")
    e("v_lshlrev_b32 v8, 4, v2")
    e("v_add_u32 v8, 4096, v8")
    e("s_waitcnt lgkmcnt(0)")
    e("v_max3_f32 v16, v96, v98, v100")
    e("v_max3_f32 v16, v16, v102, v104")
    e("v_max3_f32 v16, v16, v106, v108")
    e("v_max_f32 v16, v16, v110")
    for w in range(8):
        e(f"v_sub_f32 v{96+2*w}, v{96+2*w}, v16")
        e(f"v_mul_f32 v{96+2*w}, s{S_C}, v{96+2*w}")
        e(f"v_exp_f32 v{96+2*w}, v{96+2*w}")
    e("s_nop 0")
    e("v_mul_f32 v17, v96, v97")
    e("v_mul_f32 v12, v96, v112")
    for w in range(1, 8):
        e(f"v_fmac_f32 v17, v{96+2*w}, v{97+2*w}")
        e(f"v_fmac_f32 v12, v{96+2*w}, v{112+w}")
    e("s_nop 1")
    e(f"v_mov_b32_dpp v13, v12 quad_perm:[1,0,3,2] {DPPM}")
    e("s_mov_b32 exec_lo, 0x55555555")
    e("s_mov_b32 exec_hi, 0x55555555")
    e("buffer_store_dwordx4 v[12:15], v9, s[40:43], s69 offen sc1")
    e("s_mov_b64 exec, -1")
    e("v_and_b32 v6, 255, v0")
    e("v_cmp_eq_u32 vcc, 0, v6")
    e("s_and_saveexec_b64 s[72:73], vcc")
    e("buffer_store_dwordx4 v[16:19], v8, s[40:43], s69 offen sc1")
    e("s_mov_b64 exec, s[72:73]")
    e("v_lshrrev_b32 v12, 4, v1")
    e("v_bfe_u32 v13, v1, 2, 2")
    e("v_lshl_add_u32 v13, v12, 3, v13")
    e("v_mul_u32_u24 v20, 224, v13")
    e("v_and_b32 v13, 3, v1")
    e("v_lshl_add_u32 v20, v13, 3, v20")
    e(f"s_mul_i32 s70, s{S_WAVE}, {64*224}")
    e("v_add_u32 v20, s70, v20")
    e("v_lshlrev_b32 v21, 4, v12")
    e(f"s_lshl_b32 s70, s{S_WAVE}, 7")
    e(f"s_add_u32 s70, s70, {L_OL}")
    e("v_add_u32 v21, s70, v21")
    e("v_lshlrev_b32 v22, 2, v1")
    e(f"s_mul_i32 s70, s{S_WAVE}, 448")
    e(f"s_add_u32 s70, s70, {L_CMB}")
    e("v_add_u32 v22, s70, v22")
    e("v_lshlrev_b32 v6, 1, v0")
    e(f"v_add_u32 v6, {L_OL}, v6")
    for (src, dst) in [(32, 128), (46, 156), (60, 184)]:
        for i in range(14):
            e(f"v_lshlrev_b32 v{dst+2*i}, 16, v{src+i}")
            e(f"v_and_b32 v{dst+2*i+1}, 0xffff0000, v{src+i}")
    e(f"s_mul_i32 s69, s{S_PAIR}, {4*PG_STRIDE}")
    e(f"s_cmp_lg_u32 s{S_WAVE}, 0")
    e("s_cbranch_scc1 L_H1_DONE")
    e("v_lshrrev_b32 v10, 1, v1")
    e(f"v_mul_u32_u24 v10, {PG_STRIDE}, v10")
    e("v_and_b32 v11, 1, v1")
    e("v_lshl_add_u32 v10, v11, 4, v10")
    e("v_add_u32 v10, 4096, v10")
    e("v_lshlrev_b32 v11, 3, v1")
    e(f"v_add_u32 v11, {L_ML2}, v11")
    e("s_mov_b64 exec, 0xff")
    poll("L_H1", lambda: e("buffer_load_dwordx4 v[96:99], v10, s[40:43], s69 offen sc1"), [96], sleep=PSL)
    e("ds_write_b64 v11, v[96:97]")
    e("s_mov_b64 exec, -1")
    e("s_waitcnt lgkmcnt(0)")
    lbl("L_H1_DONE")
    e("s_barrier")
    stamp()
    e("v_lshlrev_b32 v3, 3, v2")
    e(f"v_add_u32 v3, {L_ML2}, v3")
    for s in range(4):
        e(f"ds_read_b64 v[{112+2*s}:{113+2*s}], v3 offset:{s*16}")
    def iss2():
        e("s_mov_b32 s70, s69")
        for s in range(4):
            e(f"buffer_load_dwordx4 v[{96+4*s}:{99+4*s}], v9, s[40:43], s70 offen sc1")
            e(f"s_add_u32 s70, s70, {PG_STRIDE}")
    poll("L_T2", iss2, [96, 100, 104, 108], sleep=1)
    e("v_and_b32 v7, 1, v0")
    e("v_cmp_eq_u32 vcc, 1, v7")
    e("s_waitcnt lgkmcnt(0)")
    e("s_nop 0")
    for s in range(4):
        e(f"v_cndmask_b32 v{96+4*s}, v{96+4*s}, v{97+4*s}, vcc")
    e("v_max3_f32 v10, v112, v114, v116")
    e("v_max_f32 v10, v10, v118")
    for s in range(4):
        e(f"v_sub_f32 v{112+2*s}, v{112+2*s}, v10")
        e(f"v_mul_f32 v{112+2*s}, s{S_C}, v{112+2*s}")
        e(f"v_exp_f32 v{112+2*s}, v{112+2*s}")
    e("s_nop 0")
    e("v_mul_f32 v11, v112, v113")
    e("v_mul_f32 v7, v112, v96")
    for s in range(1, 4):
        e(f"v_fmac_f32 v11, v{112+2*s}, v{113+2*s}")
        e(f"v_fmac_f32 v7, v{112+2*s}, v{96+4*s}")
    e("v_rcp_f32 v10, v11")
    e("s_nop 0")
    e("v_mul_f32 v8, v7, v10")
    e("v_fma_f32 v7, -v8, v11, v7")
    e("v_fma_f32 v8, v7, v10, v8")
    e("v_cvt_pk_bf16_f32 v8, v8, v8")
    e("ds_write_b16 v6, v8")
    e("s_waitcnt lgkmcnt(0)")
    e("s_barrier")
    e("ds_read_b128 v[96:99], v21")
    e("ds_read_b128 v[100:103], v21 offset:64")
    for st in range(2):
        for cg in range(7):
            r = 212 + ((st*7+cg) % 11)*4 if False else None
    frag = [212+4*i for i in range(11)] + [104, 108, 112]
    for st in range(2):
        for cg in range(7):
            f = frag[st*7+cg]
            e(f"ds_read_b64_tr_b16 v[{f}:{f+1}], v20 offset:{st*32*224 + cg*32}")
            e(f"ds_read_b64_tr_b16 v[{f+2}:{f+3}], v20 offset:{st*32*224 + 4*224 + cg*32}")
    e("s_waitcnt lgkmcnt(0)")
    acc = [32+4*i for i in range(7)]
    for cg in range(7):
        f = frag[cg]
        e(f"v_mfma_f32_16x16x32_bf16 v[{acc[cg]}:{acc[cg]+3}], v[96:99], v[{f}:{f+3}], 0")
    for cg in range(7):
        f = frag[7+cg]
        e(f"v_mfma_f32_16x16x32_bf16 v[{acc[cg]}:{acc[cg]+3}], v[100:103], v[{f}:{f+3}], v[{acc[cg]}:{acc[cg]+3}]")
    e("s_mov_b64 exec, 0xffff")
    e("s_nop 7")
    for cg in range(7):
        e(f"ds_write_b32 v22, v{acc[cg]} offset:{cg*64}")
    e("s_mov_b64 exec, -1")
    e("s_waitcnt lgkmcnt(0)")
    e("s_barrier")
    e(f"s_mul_i32 s69, s{S_B}, {8*3584}")
    e(f"s_cmp_ge_u32 s{S_WAVE}, 2")
    e("s_cbranch_scc1 L_T3B")
    for ks in range(8):
        e(f"ds_read_b32 v{96+ks}, v5 offset:{ks*448}")
    e(f"s_mul_i32 s70, s{S_HKV}, 3584")
    e(f"s_mul_i32 s71, s{S_SPLIT}, 896")
    e("s_add_u32 s70, s70, s71")
    e("s_add_u32 s70, s70, s69")
    e("v_cmp_gt_u32 vcc, 112, v0")
    e("s_and_b32 vcc_lo, vcc_lo, 0x55555555")
    e("s_and_b32 vcc_hi, vcc_hi, 0x55555555")
    e("s_waitcnt lgkmcnt(0)")
    for st in [4, 2]:
        for i in range(st):
            e(f"v_add_f32 v{96+i}, v{96+i}, v{96+st+i}")
    e("v_add_f32 v12, v96, v97")
    e("s_nop 1")
    e(f"v_mov_b32_dpp v13, v12 quad_perm:[1,0,3,2] {DPPM}")
    e("s_and_saveexec_b64 s[72:73], vcc")
    e("buffer_store_dwordx4 v[12:15], v9, s[52:55], s70 offen sc1")
    e("s_mov_b64 exec, s[72:73]")
    lbl("L_T3B")
    e(f"s_cmp_lg_u32 s{S_WAVE}, 0")
    e("s_cbranch_scc1 L_H2_DONE")
    e("v_mul_u32_u24 v10, 896, v1")
    e("v_add_u32 v10, 880, v10")
    e("s_mov_b32 exec_hi, 0")
    poll("L_H2", lambda: e("buffer_load_dwordx4 v[96:99], v10, s[52:55], s69 offen sc1"), [96], sleep=PSL)
    e("s_mov_b64 exec, -1")
    lbl("L_H2_DONE")
    e("s_barrier")
    stamp()
    e(f"s_cmp_eq_u32 s{S_WAVE}, 7")
    e("s_cbranch_scc1 L_T4SKIP")
    def iss4():
        e("s_mov_b32 s70, s69")
        for p in range(8):
            e(f"buffer_load_dwordx4 v[{96+4*p}:{99+4*p}], v9, s[52:55], s70 offen sc1")
            e("s_add_u32 s70, s70, 3584")
    poll("L_T4", iss4, [96+4*p for p in range(8)], sleep=1)
    e("v_and_b32 v7, 1, v0")
    e("v_cmp_eq_u32 vcc, 1, v7")
    e(f"v_add_u32 v5, {L_H}, v4")
    e("s_nop 0")
    for p in range(8):
        e(f"v_cndmask_b32 v{96+4*p}, v{96+4*p}, v{97+4*p}, vcc")
    e("v_add_f32 v96, v96, v100")
    e("v_add_f32 v104, v104, v108")
    e("v_add_f32 v112, v112, v116")
    e("v_add_f32 v120, v120, v124")
    e("v_add_f32 v96, v96, v104")
    e("v_add_f32 v112, v112, v120")
    e("v_add_f32 v96, v96, v112")
    round_bf16(96, 97)
    e("v_lshlrev_b32 v74, 16, v74")
    e("v_add_f32 v96, v96, v74")
    round_bf16(96, 97)
    e("ds_write_b32 v5, v96")
    e("s_waitcnt lgkmcnt(0)")
    lbl("L_T4SKIP")
    e("s_barrier")
    e(f"s_cmp_eq_u32 s{S_WAVE}, 7")
    e("s_cbranch_scc1 L_END")
    e("v_lshlrev_b32 v6, 2, v1")
    e(f"v_add_u32 v6, {L_H}, v6")
    xs = list(range(10, 17))
    for i in range(7):
        e(f"ds_read_b32 v{xs[i]}, v6 offset:{i*256}")
    e(f"s_lshl_b32 s69, s{S_SPLIT}, 3")
    e(f"s_add_u32 s69, s69, s{S_HKV}")
    e("s_mul_i32 s69, s69, 14")
    e(f"s_lshl_b32 s70, s{S_WAVE}, 1")
    e("s_add_u32 s69, s69, s70")
    e("s_lshl_b32 s70, s69, 2")
    e(f"s_add_u32 s70, s70, {L_H}")
    e("v_mov_b32 v7, s70")
    e("ds_read_b64 v[34:35], v7")
    e("s_waitcnt lgkmcnt(0)")
    layernorm_wave(xs, 448, 2)
    e("v_add_f32 v2, v10, v11")
    e("v_mul_f32 v3, v10, v10")
    e("v_fmac_f32 v3, v11, v11")
    for x in xs[2:]:
        e(f"v_add_f32 v2, v2, v{x}")
        e(f"v_fmac_f32 v3, v{x}, v{x}")
    e("s_and_b32 s70, s69, 63")
    e("s_lshr_b32 s71, s69, 6")
    e("s_add_u32 s74, s69, 1")
    e("s_and_b32 s75, s74, 63")
    e("s_lshr_b32 s76, s74, 6")
    e("v_mov_b32 v36, v10")
    e("v_mov_b32 v37, v10")
    for i in range(1, 7):
        e(f"s_cmp_eq_u32 s71, {i}")
        e("s_cselect_b64 s[72:73], -1, 0")
        e(f"v_cndmask_b32 v36, v36, v{10+i}, s[72:73]")
        e(f"s_cmp_eq_u32 s76, {i}")
        e("s_cselect_b64 s[72:73], -1, 0")
        e(f"v_cndmask_b32 v37, v37, v{10+i}, s[72:73]")
    wave_allreduce2(2, 3, 4, 5, 6, 7)
    e("v_readlane_b32 s40, v36, s70")
    e("v_readlane_b32 s41, v37, s75")
    e(f"v_mul_f32 v5, {hexf(1.0/448)}, v2")
    e(f"v_mul_f32 v2, {hexf(1.0/448)}, v3")
    e("v_fma_f32 v2, -v5, v5, v2")
    e("v_max_f32 v2, 0, v2")
    e("v_mov_b32 v36, s40")
    e("v_mov_b32 v37, s41")
    ln_finish_stats(2, 5, 3, 7, 448, 1e-5)
    ln_apply([36, 37], 5, 7, 3)
    k1 = -2.0*0.7978845608028654*1.4426950408889634
    k2 = k1*0.044715
    e(f"s_mov_b32 s42, {hexf(k1)}")
    e(f"s_mov_b32 s43, {hexf(k2)}")
    e("v_mov_b32 v40, 0")
    e("v_mov_b32 v41, 0")
    e("v_mov_b32 v42, s42")
    e("v_mov_b32 v38, s43")
    stamp()
    for i in range(0, 28, 2):
        for q in range(2):
            u, a = 44+q*4, 46+q*4
            w1, b1 = 128+i+q, 156+i+q
            w1p, b1p = w1 & ~1, b1 & ~1
            sel = (w1 & 1)
            e(f"v_pk_fma_f32 v[{u}:{u+1}], v[36:37], v[{w1p}:{w1p+1}], v[{b1p}:{b1p+1}] op_sel:[0,{sel},{sel}] op_sel_hi:[1,{sel},{sel}]")
            e(f"v_pk_mul_f32 v[{a}:{a+1}], v[{u}:{u+1}], v[{u}:{u+1}]")
        for q in range(2):
            u, a = 44+q*4, 46+q*4
            e(f"v_pk_fma_f32 v[{a}:{a+1}], v[{a}:{a+1}], v[38:39], v[42:43] op_sel:[0,0,0] op_sel_hi:[1,0,0]")
            e(f"v_pk_mul_f32 v[{a}:{a+1}], v[{a}:{a+1}], v[{u}:{u+1}]")
        for q in range(2):
            a = 46+q*4
            e(f"v_exp_f32 v{a}, v{a}")
            e(f"v_exp_f32 v{a+1}, v{a+1}")
        for q in range(2):
            u, a = 44+q*4, 46+q*4
            w2 = 184+i+q; w2p = w2 & ~1; sel = w2 & 1
            e(f"v_pk_mul_f32 v[{u}:{u+1}], v[{u}:{u+1}], v[{w2p}:{w2p+1}] op_sel:[0,{sel}] op_sel_hi:[1,{sel}]")
            e(f"v_pk_add_f32 v[{a}:{a+1}], v[{a}:{a+1}], 1.0 op_sel_hi:[1,0]")
        for q in range(2):
            a = 46+q*4
            e(f"v_rcp_f32 v{a}, v{a}")
            e(f"v_rcp_f32 v{a+1}, v{a+1}")
        e("s_nop 0")
        for q in range(2):
            u, a = 44+q*4, 46+q*4
            e(f"v_pk_fma_f32 v[40:41], v[{u}:{u+1}], v[{a}:{a+1}], v[40:41]")
    wave_allreduce2(40, 41, 44, 45, 46, 47)
    e("v_lshlrev_b32 v75, 16, v75")
    round_bf16_list([40, 41], 44)
    e("v_add_f32 v40, v40, v75")
    e("v_add_f32 v41, v41, v75")
    round_bf16_list([40, 41], 44)
    e("v_add_f32 v40, v40, v34")
    e("v_add_f32 v41, v41, v35")
    e("v_cvt_pk_bf16_f32 v40, v40, v41")
    srd(56, 24, 8*448*2)
    e(f"s_mul_i32 s70, s{S_B}, 448")
    e("s_add_u32 s70, s70, s69")
    e("s_lshl_b32 s70, s70, 1")
    e("v_mov_b32 v7, 0")
    e("v_cmp_eq_u32 vcc, 0, v1")
    e("s_and_saveexec_b64 s[72:73], vcc")
    e("buffer_store_dword v40, v7, s[56:59], s70 offen")
    if STAMP:
        stamp()
        e("s_waitcnt lgkmcnt(0) vmcnt(0)")
        e(f"s_cmp_lg_u32 s{S_WAVE}, 0")
        e("s_cbranch_scc1 L_END")
        srd(56, 28, 65536, 0x200000)
        e("s_lshl_b32 s69, s2, 6")
        for i in range(nstamp[0]):
            e(f"s_sub_u32 s70, s{80+2*i}, s80")
            e("v_mov_b32 v2, s70")
            e(f"buffer_store_dword v2, v7, s[56:59], s69 offen offset:{i*4}")
        e("v_mov_b32 v2, s80")
        e(f"buffer_store_dword v2, v7, s[56:59], s69 offen offset:60")
    lbl("L_END")
    e("s_endpgm")
    e('.section .rodata,"a"')
    e(".p2align 6")
    e(f".amdhsa_kernel {k}")
    e("  .amdhsa_next_free_vgpr 256")
    e("  .amdhsa_next_free_sgpr 102")
    e("  .amdhsa_accum_offset 256")
    e("  .amdhsa_group_segment_fixed_size 0")
    e("  .amdhsa_kernarg_size 104")
    e("  .amdhsa_user_sgpr_count 2")
    e("  .amdhsa_user_sgpr_kernarg_segment_ptr 1")
    e("  .amdhsa_system_sgpr_workgroup_id_x 1")
    e(".end_amdhsa_kernel")

hdr = open(f"cdna_kernels/{NAME}.s.ref").read().split("\n")
for h in hdr:
    if h.startswith(";") and "@launch" not in h and "Override launch" not in h and "grid=ceil" not in h:
        e(h)
e(f"; @launch grid=(256,1,1) block=(512,1,1) lds={L_END}")
e('.amdgcn_target "amdgcn-amd-amdhsa--gfx950"')
gen()
open(OUT, "w").write("\n".join(L) + "\n")
print("wrote", OUT, len(L), "lines; lds", L_END)
```
